```python
import torch

def _softmax(x, axis=-1):
    return torch.softmax(x, dim=axis)
def _gelu(x):
    return torch.nn.functional.gelu(x, approximate="tanh")
def _silu(x):
    return torch.nn.functional.silu(x)
def _sigmoid(x):
    return torch.sigmoid(x)
def _layernorm(x, axis=-1, eps=1e-5):
    m = x.mean(dim=axis, keepdim=True)
    v = x.var(dim=axis, keepdim=True, unbiased=False)
    return (x - m) / torch.sqrt(v + eps)
def _scatter_add(tgt, idx, src, axis=0):
    return tgt.clone().index_add_(axis, idx, src)
def _segment_sum(src, seg, n):
    out = torch.zeros((n,) + src.shape[1:], dtype=src.dtype)
    return out.index_add_(0, seg, src)
def _pad(x, pw):
    flat = tuple(v for pair in reversed(pw) for v in pair)
    return torch.nn.functional.pad(x, flat)

kernel_name = 'concat_heads__softmax_full_mha__sliding_local_dilated__prompt'

def setup_inputs():

    _w = (lambda a: (lambda t: t.to(torch.bfloat16) if t.is_floating_point() else t)(torch.as_tensor(a)))
    def _A_setup():
        B, S, D = 1, 2048, 640
        return {
            "x": _w((lambda *s: torch.randn(*s, dtype=torch.bfloat16) * 0.2)(B, S, D)),
            "wqkv": _w((lambda *s: torch.randn(*s, dtype=torch.bfloat16) * 0.4)(D, 3 * D)),
            "wo": _w((lambda *s: torch.randn(*s, dtype=torch.bfloat16) * 0.1)(D, D)),
        }
    _A_in = _A_setup()

    def _B_setup():
        B, S, D = 1, 2048, 640
        return {
            "x": _w((lambda *s: torch.randn(*s, dtype=torch.bfloat16) * 0.4)(B, S, D)),
            "wqkv": _w((lambda *s: torch.randn(*s, dtype=torch.bfloat16) * 0.4)(D, 3 * D)),
            "wo": _w((lambda *s: torch.randn(*s, dtype=torch.bfloat16) * 0.05)(D, D)),
        }
    _B_in = _B_setup()

    return {
        "A_x": _A_in["x"],
        "A_wqkv": _A_in["wqkv"],
        "A_wo": _A_in["wo"],
        "B_x": _B_in["x"],
        "B_wqkv": _B_in["wqkv"],
        "B_wo": _B_in["wo"],
    }

def reference(A_x, A_wqkv, A_wo, B_x, B_wqkv, B_wo):
    def _A_ref(x, wqkv, wo):
        B, S, D = x.shape
        H = 32; Dh = D // H
        qkv = (lambda x, *d: x.permute(*d))((x @ wqkv).reshape(B, S, 3, H, Dh), 2, 0, 3, 1, 4)
        q, k, v = qkv[0], qkv[1], qkv[2]
        scale = Dh ** -0.5
        scores = torch.einsum("bhqd,bhkd->bhqk", q, k) * scale
        p = _softmax(scores, axis=-1)
        o = torch.einsum("bhqk,bhkd->bhqd", p, v)
        return (lambda x, *d: x.permute(*d))(o, 0, 2, 1, 3).reshape(B, S, D) @ wo

    def _B_ref(x, wqkv, wo):
        B, S, D = x.shape
        H = 32; Dh = D // H
        W, dil = 8, 2
        qkv = (lambda x, *d: x.permute(*d))((x @ wqkv).reshape(B, S, 3, H, Dh), 2, 0, 3, 1, 4)
        q, k, v = qkv[0], qkv[1], qkv[2]
        scale = Dh ** -0.5
        pos = torch.arange(S)
        off = torch.arange(W) * dil
        idx = pos[:, None] - off[None, :]
        mask = idx >= 0
        idx_c = torch.where(mask, idx, 0).reshape(-1)
        kg = k[:, :, idx_c, :].reshape(B, H, S, W, Dh)
        vg = v[:, :, idx_c, :].reshape(B, H, S, W, Dh)
        logits = torch.einsum("bhsd,bhswd->bhsw", q, kg) * scale
        logits = torch.where(mask[None, None, :, :], logits, -1e9)
        attn = _softmax(logits, axis=-1)
        o = torch.einsum("bhsw,bhswd->bhsd", attn, vg)
        return (lambda x, *d: x.permute(*d))(o, 0, 2, 1, 3).reshape(B, S, D) @ wo

    a = _A_ref(A_x, A_wqkv, A_wo)
    b = _B_ref(B_x, B_wqkv, B_wo)
    return torch.concatenate([a, b], axis=-1)
```

```python
class Asm:
    def __init__(self):
        self.L = []
    def __call__(self, s):
        for x in s.strip("\n").split("\n"):
            self.L.append(x.strip() if not x.strip().endswith(":") else x.strip())
    def text(self):
        return "\n".join(("" if l.endswith(":") else "    ") + l for l in self.L) + "\n"

def vr(b, n):
    return f"v[{b}:{b+n-1}]" if n > 1 else f"v{b}"
def sr(b, n):
    return f"s[{b}:{b+n-1}]" if n > 1 else f"s{b}"

S, D, H, DH = 2048, 640, 32, 20
XB = S * D * 2
WB = D * 3 * D * 2
WOB = D * D * 2
OUTB = S * 2 * D * 2
SEC = 64 * 40960
WS_QK = [0, 2 * SEC]
WS_V = [4 * SEC, 5 * SEC]
WS_O = [6 * SEC, 7 * SEC]
WS_END = 8 * SEC
CQ = (20 ** -0.5) * 1.4426950408889634

def f32bits(x):
    import struct
    return struct.unpack("<I", struct.pack("<f", x))[0]

def kd(name, vgpr, sgpr=96):
    acc = (vgpr + 3) // 4 * 4
    return f""".p2align 6
.amdhsa_kernel {name}
  .amdhsa_next_free_vgpr {vgpr}
  .amdhsa_next_free_sgpr {sgpr}
  .amdhsa_accum_offset {acc}
  .amdhsa_group_segment_fixed_size 0
  .amdhsa_kernarg_size 72
  .amdhsa_user_sgpr_count 2
  .amdhsa_user_sgpr_kernarg_segment_ptr 1
  .amdhsa_system_sgpr_workgroup_id_x 1
.end_amdhsa_kernel
"""
def entry(name):
    return f".globl {name}\n.p2align 8\n.type {name},@function\n{name}:\n"

def srd(a, d, lo, hi, nbytes):
    a(f"s_mov_b32 s{d}, s{lo}")
    a(f"s_and_b32 s{d+1}, s{hi}, 0xffff")
    a(f"s_mov_b32 s{d+2}, {nbytes}")
    a(f"s_mov_b32 s{d+3}, 0x20000")
```

```python
from common import *

NAME = "k1_qkv_kernel"
BUF = 49152
WOFF = 32768

def gen():
    a = Asm()
    a(entry(NAME))
    a(f"""
    s_cmp_ge_u32 s2, 256
    s_cbranch_scc1 K1_END
    s_and_b32 s3, s2, 7
    s_lshr_b32 s4, s2, 3
    s_lshr_b32 s5, s3, 2
    s_bfe_u32 s6, s3, 0x10001
    s_and_b32 s7, s3, 1
    s_and_b32 s8, s4, 3
    s_lshl_b32 s6, s6, 2
    s_add_u32 s8, s8, s6
    s_lshr_b32 s9, s4, 2
    s_lshl_b32 s7, s7, 3
    s_add_u32 s9, s9, s7
    s_cmp_ge_u32 s9, 15
    s_cbranch_scc1 K1_END
    s_mul_i32 s10, s5, 24
    s_add_u32 s12, s0, s10
    s_addc_u32 s13, s1, 0
    s_load_dwordx4 s[16:19], s[12:13], 0
    s_load_dwordx2 s[20:21], s[0:1], 64
    v_lshrrev_b32 v1, 6, v0
    v_and_b32 v2, 63, v0
    s_nop 0
    v_readfirstlane_b32 s11, v1
    s_waitcnt lgkmcnt(0)
    """)
    srd(a, 24, 16, 17, XB)
    srd(a, 28, 18, 19, WB)
    a("s_cmp_ge_u32 s11, 4")
    a("s_cbranch_scc0 K1_COMPUTE")
    a(f"""
    s_sub_u32 s12, s11, 4
    v_lshrrev_b32 v3, 3, v2
    v_mul_u32_u24 v4, 1280, v3
    v_lshrrev_b32 v5, 4, v2
    s_and_b32 s13, s12, 1
    s_lshl_b32 s13, s13, 2
    v_add_u32 v6, s13, v5
    v_and_b32 v7, 7, v2
    v_xor_b32 v7, v7, v6
    v_lshlrev_b32 v7, 4, v7
    v_add_u32 v10, v4, v7
    v_mul_u32_u24 v4, 3840, v5
    v_lshlrev_b32 v6, 2, v5
    v_and_b32 v7, 15, v2
    v_xor_b32 v7, v7, v6
    v_lshlrev_b32 v7, 4, v7
    v_add_u32 v11, v4, v7
    s_lshl_b32 s14, s8, 8
    s_lshl_b32 s15, s12, 3
    s_add_u32 s14, s14, s15
    s_mul_i32 s33, s14, 1280
    s_mul_i32 s34, s12, {4*3840}
    s_lshl_b32 s15, s9, 8
    s_add_u32 s34, s34, s15
    s_lshl_b32 s35, s12, 10
    """)
    def issue(st):
        buf = st % 3
        for i in range(8):
            a(f"s_add_u32 m0, s35, {buf*BUF + i*4096}")
            a(f"s_add_u32 s36, s33, {st*128 + i*32*1280}")
            a(f"buffer_load_dwordx4 v10, s[24:27], s36 offen lds")
        for i in range(4):
            a(f"s_add_u32 m0, s35, {buf*BUF + WOFF + i*4096}")
            a(f"s_add_u32 s36, s34, {(st*64 + i*16)*3840}")
            a(f"buffer_load_dwordx4 v11, s[28:31], s36 offen lds")
    issue(0); issue(1)
    for st in range(10):
        a(f"s_waitcnt vmcnt({12 if st < 9 else 0})")
        a("s_barrier")
        if st + 2 < 10:
            issue(st + 2)
    a("s_endpgm")
    a("K1_COMPUTE:")
    ACC = 0
    FX = [128, 152]
    FW = [144, 168]
    BX = [176, 180]
    BW = [184, 186]
    LN = 188
    a(f"""
    v_mov_b32 v{LN}, v2
    s_lshr_b32 s12, s11, 1
    s_and_b32 s13, s11, 1
    v_and_b32 v3, 31, v2
    v_lshrrev_b32 v4, 5, v2
    s_lshl_b32 s14, s12, 7
    v_add_u32 v5, s14, v3
    v_lshlrev_b32 v5, 7, v5
    v_bfe_u32 v6, v3, 1, 3
    """)
    for s in range(4):
        a(f"v_add_u32 v7, {2*s}, v4")
        a(f"v_xor_b32 v7, v7, v6")
        a(f"v_lshlrev_b32 v7, 4, v7")
        a(f"v_add_u32 v{BX[0]+s}, v5, v7")
        a(f"v_add_u32 v{BX[1]+s}, {2*BUF}, v{BX[0]+s}")
    a(f"""
    v_and_b32 v5, 15, v2
    v_lshrrev_b32 v6, 2, v5
    v_lshlrev_b32 v7, 3, v4
    v_add_u32 v7, v7, v6
    v_lshlrev_b32 v7, 8, v7
    v_bfe_u32 v8, v2, 4, 1
    v_lshlrev_b32 v8, 5, v8
    v_add_u32 v7, v7, v8
    v_and_b32 v8, 3, v5
    v_lshlrev_b32 v8, 3, v8
    v_add_u32 v7, v7, v8
    v_add_u32 v7, {WOFF}, v7
    s_lshl_b32 s14, s13, 1
    """)
    for f in range(2):
        a(f"s_add_u32 s15, s14, {f}")
        a(f"v_xor_b32 v8, s15, v6")
        a(f"v_lshlrev_b32 v8, 6, v8")
        a(f"v_add_u32 v{BW[0]+f}, v7, v8")
        a(f"v_add_u32 v{BW[1]+f}, {2*BUF}, v{BW[0]+f}")
    for r in range(128):
        a(f"v_mov_b32 v{ACC+r}, 0")

    def reads(gs):
        st, s = divmod(gs, 4)
        buf = st % 3
        fs = gs & 1
        bs = 1 if buf == 2 else 0
        bo = 0 if buf == 2 else buf * BUF
        R = []
        for f in range(2):
            for half in range(2):
                R.append(f"ds_read_b64_tr_b16 {vr(FW[fs]+4*f+2*half,2)}, v{BW[bs]+f} offset:{bo + (16*s+4*half)*256}")
        for tb in range(4):
            R.append(f"ds_read_b128 {vr(FX[fs]+4*tb,4)}, v{BX[bs]+s} offset:{bo + tb*4096}")
        return R

    def mainloop(vtile):
        a("s_barrier")
        for r in reads(0): a(r)
        for gs in range(40):
            st, s = divmod(gs, 4)
            fs = gs & 1
            a("s_waitcnt lgkmcnt(0)")
            if s == 3 and st < 9:
                a("s_barrier")
            R = reads(gs + 1) if gs + 1 < 40 else []
            for i in range(8):
                tb, f = i >> 1, i & 1
                acc = vr(ACC + (tb*2+f)*16, 16)
                x = vr(FX[fs]+4*tb, 4); w = vr(FW[fs]+4*f, 4)
                if vtile:
                    a(f"v_mfma_f32_32x32x16_bf16 {acc}, {x}, {w}, {acc}")
                else:
                    a(f"v_mfma_f32_32x32x16_bf16 {acc}, {w}, {x}, {acc}")
                if i < len(R): a(R[i])
        a("s_nop 15")

    a("s_cmp_ge_u32 s9, 10")
    a("s_cbranch_scc1 K1_VTILE")
    mainloop(False)
    a(f"""
    s_cmp_lt_u32 s9, 5
    s_cselect_b32 s40, {f32bits(CQ)}, 0x3f800000
    s_cselect_b32 s41, 0, {SEC}
    s_cselect_b32 s42, 0, 5
    s_sub_u32 s42, s9, s42
    s_mul_i32 s43, s5, {WS_QK[1]}
    s_add_u32 s41, s41, s43
    s_add_u32 s44, s20, s41
    s_addc_u32 s45, s21, 0
    """)
    srd(a, 48, 44, 45, SEC)
    a(f"""
    s_lshl_b32 s46, s8, 3
    s_lshl_b32 s47, s12, 2
    s_add_u32 s46, s46, s47
    s_mul_i32 s46, s46, 40960
    s_lshl_b32 s47, s42, 4
    s_lshl_b32 s52, s13, 3
    s_add_u32 s47, s47, s52
    s_lshl_b32 s47, s47, 9
    s_add_u32 s46, s46, s47
    v_lshlrev_b32 v189, 4, v{LN}
    """)
    T = 128
    k = 0
    for tb in range(4):
        for f in range(2):
            acc = ACC + (tb*2+f)*16
            for r in range(16):
                a(f"v_mul_f32 v{acc+r}, s40, v{acc+r}")
            for u in range(2):
                t = T + 4*(k % 4); k += 1
                for j in range(4):
                    a(f"v_cvt_pk_bf16_f32 v{t+j}, v{acc+8*u+2*j}, v{acc+8*u+2*j+1}")
                a("s_nop 1")
                a(f"v_permlane32_swap_b32 v{t}, v{t+2}")
                a(f"v_permlane32_swap_b32 v{t+1}, v{t+3}")
                a(f"s_add_u32 s53, s46, {tb*40960 + (f*4+2*u)*512}")
                a(f"buffer_store_dwordx4 {vr(t,4)}, v189, s[48:51], s53 offen")
    a("s_endpgm")
    a("K1_VTILE:")
    mainloop(True)
    a(f"""
    s_mul_i32 s43, s5, {SEC}
    s_add_u32 s43, s43, {WS_V[0]}
    s_add_u32 s44, s20, s43
    s_addc_u32 s45, s21, 0
    """)
    srd(a, 48, 44, 45, SEC)
    a(f"""
    s_lshl_b32 s46, s8, 3
    s_lshl_b32 s47, s12, 2
    s_add_u32 s46, s46, s47
    s_mul_i32 s46, s46, 1280
    s_sub_u32 s42, s9, 10
    s_lshl_b32 s42, s42, 7
    s_lshl_b32 s47, s13, 6
    s_add_u32 s42, s42, s47
    v_and_b32 v130, 31, v{LN}
    v_lshrrev_b32 v131, 5, v{LN}
    v_mul_u32_u24 v131, 320, v131
    s_mov_b32 s52, 52429
    """)
    for f in range(2):
        a(f"""
        v_add_u32 v132, s42, v130
        v_add_u32 v132, {32*f}, v132
        v_mul_lo_u32 v133, v132, s52
        v_lshrrev_b32 v133, 20, v133
        v_mul_u32_u24 v134, 20, v133
        v_sub_u32 v134, v132, v134
        v_lshlrev_b32 v134, 4, v134
        v_add_u32 v134, v134, v131
        v_mov_b32 v135, 81920
        v_mul_lo_u32 v133, v133, v135
        v_add_u32 v{189+f}, v133, v134
        """)
    T = 136
    k = 0
    for tb in range(4):
        for f in range(2):
            acc = ACC + (tb*2+f)*16
            for u in range(2):
                t = T + 4*(k % 4); k += 1
                for j in range(4):
                    a(f"v_cvt_pk_bf16_f32 v{t+j}, v{acc+8*u+2*j}, v{acc+8*u+2*j+1}")
                a(f"s_add_u32 s53, s46, {tb*1280 + u*640}")
                a(f"buffer_store_dwordx4 {vr(t,4)}, v{189+f}, s[48:51], s53 offen")
    a("K1_END:")
    a("s_endpgm")
    return a.text(), kd(NAME, 192)
```

```python
from common import *

NAME = "k2_attn_kernel"
LN = 1
Q1, Q2 = 4, 8
AK1, AK2, AV = 10, 11, 12
T0, T1, T2 = 13, 14, 15
NEGM = 16
SS = [32, 48]
P = 64
QB1, QB2 = 72, 76
O = 80
KB1 = [96, 104]
KB2 = [100, 108]
VB = [112, 120]
LDS_K2 = 65536
LDS_V = 81920
NEGINF = 0xff800000

def mf16(a, d, x, y, c):
    a(f"v_mfma_f32_32x32x16_bf16 {vr(d,16)}, {vr(x,4)}, {vr(y,4)}, {c}")
def mf8(a, d, x, y, c):
    a(f"v_mfma_f32_32x32x8_bf16 {vr(d,16)}, {vr(x,2)}, {vr(y,2)}, {c}")

def half_bcast_max(a, v, t):
    a(f"v_mov_b32 v{t}, v{v}")
    a("s_nop 1")
    a(f"v_permlane32_swap_b32 v{v}, v{t}")
    a("s_nop 1")
    a(f"v_max_f32 v{v}, v{v}, v{t}")

def out_epilogue(a, srd_o, soff_main, soff_rem):
    a(f"""
    v_mov_b32 v{T0}, v{O+8}
    v_mov_b32 v{T1}, v{O+8}
    s_nop 1
    v_permlane32_swap_b32 v{T0}, v{T1}
    s_nop 1
    v_rcp_f32 v{T1}, v{T1}
    s_nop 1
    """)
    for r in range(12):
        a(f"v_mul_f32 v{O+r}, v{O+r}, v{T1}")
    for j in range(6):
        a(f"v_cvt_pk_bf16_f32 v{P+j}, v{O+2*j}, v{O+2*j+1}")
    a(f"""
    v_lshlrev_b32 v{T0}, 4, v{LN}
    buffer_store_dwordx4 {vr(P,4)}, v{T0}, s[{srd_o}:{srd_o+3}], s{soff_main} offen
    v_mov_b32 v{T2}, 0x40000000
    v_cmp_gt_u32 vcc, 32, v{LN}
    s_nop 1
    v_cndmask_b32 v{T2}, v{T2}, v{T0}, vcc
    buffer_store_dwordx2 {vr(P+4,2)}, v{T2}, s[{srd_o}:{srd_o+3}], s{soff_rem} offen
    """)

def tile(a, t, first_bar=False, last=False):
    c, n = t & 1, (t + 1) & 1
    Sc, Sn = SS[c], SS[n]
    E = lambda i: a(f"v_exp_f32 v{Sc+i}, v{Sc+i}")
    C = lambda j: a(f"v_cvt_pk_bf16_f32 v{P+j}, v{Sc+2*j}, v{Sc+2*j+1}")
    a("s_waitcnt lgkmcnt(0)")
    mf16(a, Sn, KB1[n], Q1, vr(NEGM, 16))
    E(0); E(1)
    mf16(a, O, VB[n] + 4, P + 4, vr(O, 16))
    a("s_mov_b64 exec, s[60:61]")
    a(f"ds_read_b128 {vr(VB[n],4)}, v{AV} offset:{(t+1)*1280}")
    a(f"ds_read_b128 {vr(VB[n]+4,4)}, v{AV} offset:{(t+1)*1280+640}")
    a("s_mov_b64 exec, -1")
    E(2); E(3); C(0); E(4); C(1)
    mf8(a, Sn, KB2[n], Q2, vr(Sn, 16))
    a(f"ds_read_b128 {vr(KB1[c],4)}, v{AK1} offset:{(t+2)*1024}")
    a(f"ds_read_b64 {vr(KB2[c],2)}, v{AK2} offset:{(t+2)*256}")
    E(5); E(6); E(7); C(2); E(8); C(3); E(9); E(10)
    mf16(a, O, VB[c], P, vr(O, 16))
    E(11); C(4); E(12); E(13); C(5); E(14); E(15); C(6)
    a("s_nop 0")
    C(7)

def gen():
    a = Asm()
    a(entry(NAME))
    a(f"""
    s_cmp_ge_u32 s2, 256
    s_cbranch_scc1 K2_END
    s_load_dwordx2 s[20:21], s[0:1], 64
    s_and_b32 s3, s2, 7
    s_lshr_b32 s4, s2, 3
    s_and_b32 s5, s4, 3
    s_lshl_b32 s3, s3, 2
    s_add_u32 s5, s5, s3
    s_lshr_b32 s6, s4, 2
    v_lshrrev_b32 v2, 6, v0
    v_and_b32 v{LN}, 63, v0
    s_nop 0
    v_readfirstlane_b32 s7, v2
    s_lshl_b32 s8, s6, 3
    s_add_u32 s8, s8, s7
    s_lshr_b32 s9, s5, 1
    s_and_b32 s10, s5, 1
    s_mul_i32 s11, s9, 5
    s_mul_i32 s12, s10, 3
    s_add_u32 s12, s12, s11
    s_lshl_b32 s12, s12, 9
    s_add_u32 s13, s11, 2
    s_lshl_b32 s13, s13, 9
    s_lshl_b32 s14, s10, 3
    s_add_u32 s13, s13, s14
    s_mul_i32 s15, s8, 40960
    s_mul_i32 s16, s5, 81920
    s_waitcnt lgkmcnt(0)
    """)
    def mk(d, off):
        a(f"s_add_u32 s22, s20, {off}")
        a(f"s_addc_u32 s23, s21, 0")
        srd(a, d, 22, 23, SEC)
    mk(24, WS_QK[0]); mk(28, WS_QK[0] + SEC); mk(32, WS_V[0]); mk(36, WS_O[0])
    mk(40, WS_QK[1]); mk(44, WS_QK[1] + SEC); mk(48, WS_V[1]); mk(52, WS_O[1])
    a(f"""
    v_and_b32 v2, 31, v{LN}
    v_lshrrev_b32 v3, 5, v{LN}
    v_lshlrev_b32 v{AK1}, 4, v{LN}
    v_lshlrev_b32 v{T0}, 4, v2
    v_mov_b32 v{T1}, 0x40000000
    v_cmp_gt_u32 vcc, 32, v{LN}
    s_nop 1
    v_cndmask_b32 v{T1}, v{T1}, v{T0}, vcc
    v_mul_u32_u24 v{AV}, 320, v3
    v_add_u32 v{AV}, v{AV}, v{T0}
    v_cmp_gt_u32 s[60:61], 20, v2
    v_cmp_eq_u32 vcc, 20, v2
    v_mov_b32 v{T2}, 0x3f803f80
    s_nop 0
    v_cndmask_b32 v{T2}, 0, v{T2}, vcc
    """)
    for r in range(16):
        a(f"v_mov_b32 v{VB[0]+r}, v{T2}")
    a(f"""
    s_cmp_eq_u32 s8, 0
    s_cselect_b32 s17, 0, 1
    s_sub_u32 s18, s8, s17
    s_mul_i32 s19, s18, 40960
    s_add_u32 s62, s15, s12
    buffer_load_dwordx4 {vr(QB1,4)}, v{AK1}, s[40:43], s62 offen
    buffer_load_dwordx4 {vr(KB1[0],4)}, v{AK1}, s[44:47], s62 offen
    s_add_u32 s62, s15, s13
    buffer_load_dwordx2 {vr(QB2,2)}, v{T1}, s[40:43], s62 offen
    buffer_load_dwordx2 {vr(KB2[0],2)}, v{T0}, s[44:47], s62 offen
    s_add_u32 s62, s19, s12
    buffer_load_dwordx4 {vr(KB1[1],4)}, v{AK1}, s[44:47], s62 offen
    s_add_u32 s62, s19, s13
    buffer_load_dwordx2 {vr(KB2[1],2)}, v{T0}, s[44:47], s62 offen
    s_mul_i32 s63, s8, 1280
    s_add_u32 s63, s63, s16
    s_mul_i32 s64, s18, 1280
    s_add_u32 s64, s64, s16
    s_mov_b64 exec, s[60:61]
    buffer_load_dwordx4 {vr(VB[0],4)}, v{AV}, s[48:51], s63 offen
    buffer_load_dwordx4 {vr(VB[0]+4,4)}, v{AV}, s[48:51], s63 offen offset:640
    buffer_load_dwordx4 {vr(VB[1],4)}, v{AV}, s[48:51], s64 offen offset:640
    s_mov_b64 exec, -1
    """)
    a(f"""
    s_add_u32 s62, s15, s12
    buffer_load_dwordx4 {vr(Q1,4)}, v{AK1}, s[24:27], s62 offen
    s_add_u32 s62, s15, s13
    buffer_load_dwordx2 {vr(Q2,2)}, v{T1}, s[24:27], s62 offen
    """)
    a(f"""
    v_lshrrev_b32 v2, 1, v{LN}
    v_lshlrev_b32 v2, 4, v2
    v_and_b32 v3, 1, v{LN}
    v_lshlrev_b32 v3, 2, v3
    v_add_u32 v2, v2, v3
    s_mul_i32 s65, s7, 40960
    s_add_u32 s66, s65, s13
    s_add_u32 s65, s65, s12
    s_lshl_b32 s67, s7, 10
    s_add_u32 s68, s67, s16
    s_lshl_b32 s69, s7, 8
    """)
    def dK(r):
        a(f"s_add_u32 m0, s67, {r*8192}")
        a(f"s_add_u32 s62, s65, {r*8*40960}")
        a(f"buffer_load_dwordx4 v{AK1}, s[28:31], s62 offen lds")
        a(f"s_add_u32 m0, s69, {LDS_K2 + r*2048}")
        a(f"s_add_u32 s62, s66, {r*8*40960}")
        a(f"buffer_load_dword v2, s[28:31], s62 offen lds")
    def dV(i):
        a(f"s_add_u32 m0, s67, {LDS_V + i*8192}")
        a(f"s_add_u32 s62, s68, {i*8192}")
        a(f"buffer_load_dwordx4 v{AK1}, s[32:35], s62 offen lds")
    dK(0); dV(0); dV(1)
    for r in range(1, 8):
        dK(r); dV(r + 1)
    dV(9)
    a(f"""
    v_and_b32 v2, 31, v{LN}
    v_lshlrev_b32 v{AK2}, 3, v2
    v_add_u32 v{AK2}, {LDS_K2}, v{AK2}
    v_add_u32 v{AV}, {LDS_V}, v{AV}
    """)
    a(f"""
    v_add_u32 v3, 18, v2
    v_mov_b32 v16, 0x5555
    v_mov_b32 v17, 0
    v_lshlrev_b64 v[16:17], v3, v[16:17]
    v_lshrrev_b32 v3, 5, v{LN}
    v_lshlrev_b32 v3, 2, v3
    v_lshrrev_b64 v[16:17], v3, v[16:17]
    s_sub_u32 s62, 0, s17
    v_and_b32 v16, s62, v16
    v_not_b32 v16, v16
    v_not_b32 v17, v17
    """)
    for g in range(4):
        for r in range(4):
            a(f"v_bfe_i32 v{SS[0]+4*g+r}, v17, {8*g+r}, 1")
            a(f"v_lshlrev_b32 v{SS[0]+4*g+r}, 23, v{SS[0]+4*g+r}")
    for g in range(4):
        for r in range(4):
            if g < 2:
                a(f"v_mov_b32 v{SS[1]+4*g+r}, 0x{NEGINF:x}")
            else:
                a(f"v_bfe_i32 v{SS[1]+4*g+r}, v16, {8*g+r}, 1")
                a(f"v_lshlrev_b32 v{SS[1]+4*g+r}, 23, v{SS[1]+4*g+r}")
    a("s_waitcnt vmcnt(28)")
    mf16(a, SS[0], KB1[0], QB1, vr(SS[0], 16))
    mf16(a, SS[1], KB1[1], QB1, vr(SS[1], 16))
    mf8(a, SS[0], KB2[0], QB2, vr(SS[0], 16))
    mf8(a, SS[1], KB2[1], QB2, vr(SS[1], 16))
    a("s_nop 15")
    regs = [SS[0] + i for i in range(16)] + [SS[1] + 8 + i for i in range(8)]
    a(f"v_max3_f32 v{T0}, v{regs[0]}, v{regs[1]}, v{regs[2]}")
    for i in range(3, 23, 2):
        a(f"v_max3_f32 v{T0}, v{T0}, v{regs[i]}, v{regs[i+1]}")
    a(f"v_max_f32 v{T0}, v{T0}, v{regs[23]}")
    half_bcast_max(a, T0, T1)
    for r in regs:
        a(f"v_sub_f32 v{r}, v{r}, v{T0}")
    for r in regs:
        a(f"v_exp_f32 v{r}, v{r}")
    a("s_nop 0")
    for j in range(8):
        a(f"v_cvt_pk_bf16_f32 v{P+j}, v{SS[0]+2*j}, v{SS[0]+2*j+1}")
    for j in range(4):
        a(f"v_cvt_pk_bf16_f32 v{QB1+j}, v{SS[1]+8+2*j}, v{SS[1]+8+2*j+1}")
    a("s_nop 1")
    mf16(a, O, VB[0], P, "0")
    mf16(a, O, VB[0] + 4, P + 4, vr(O, 16))
    mf16(a, O, VB[1], QB1, vr(O, 16))
    a(f"""
    s_lshl_b32 s62, s10, 1
    s_add_u32 s62, s62, s11
    s_lshl_b32 s62, s62, 9
    s_add_u32 s70, s62, s15
    s_add_u32 s62, s11, 4
    s_lshl_b32 s62, s62, 9
    s_add_u32 s62, s62, s14
    s_add_u32 s71, s62, s15
    s_nop 15
    """)
    out_epilogue(a, 52, 70, 71)
    a("s_waitcnt vmcnt(24)")
    a("s_barrier")
    a("s_mov_b32 s72, 1")
    a("s_mov_b32 s73, 0")
    a(f"""
    ds_read_b128 {vr(KB1[0],4)}, v{AK1}
    ds_read_b64 {vr(KB2[0],2)}, v{AK2}
    s_waitcnt lgkmcnt(0)
    """)
    mf16(a, SS[0], KB1[0], Q1, "0")
    mf8(a, SS[0], KB2[0], Q2, vr(SS[0], 16))
    a("s_nop 15")
    a(f"v_max3_f32 v{T0}, v{SS[0]}, v{SS[0]+1}, v{SS[0]+2}")
    for i in range(3, 15, 2):
        a(f"v_max3_f32 v{T0}, v{T0}, v{SS[0]+i}, v{SS[0]+i+1}")
    a(f"v_max_f32 v{T0}, v{T0}, v{SS[0]+15}")
    half_bcast_max(a, T0, T1)
    a("K2_RESTART:")
    for r in range(16):
        a(f"v_sub_f32 v{NEGM+r}, 0, v{T0}")
    for r in range(16):
        a(f"v_mov_b32 v{O+r}, 0")
    for r in range(4):
        a(f"v_mov_b32 v{P+4+r}, 0")
    a(f"""
    v_lshlrev_b32 v{AK1}, 4, v{LN}
    v_and_b32 v2, 31, v{LN}
    v_lshlrev_b32 v{AK2}, 3, v2
    v_add_u32 v{AK2}, {LDS_K2}, v{AK2}
    v_lshrrev_b32 v3, 5, v{LN}
    v_mul_u32_u24 v{AV}, 320, v3
    v_lshlrev_b32 v2, 4, v2
    v_add_u32 v{AV}, v{AV}, v2
    v_add_u32 v{AV}, {LDS_V}, v{AV}
    ds_read_b128 {vr(KB1[0],4)}, v{AK1}
    ds_read_b64 {vr(KB2[0],2)}, v{AK2}
    ds_read_b128 {vr(KB1[1],4)}, v{AK1} offset:1024
    ds_read_b64 {vr(KB2[1],2)}, v{AK2} offset:256
    s_mov_b64 exec, s[60:61]
    ds_read_b128 {vr(VB[0],4)}, v{AV}
    ds_read_b128 {vr(VB[0]+4,4)}, v{AV} offset:640
    ds_read_b128 {vr(VB[1]+4,4)}, v{AV} offset:640
    s_mov_b64 exec, -1
    s_waitcnt lgkmcnt(0)
    """)
    mf16(a, SS[0], KB1[0], Q1, vr(NEGM, 16))
    mf8(a, SS[0], KB2[0], Q2, vr(SS[0], 16))
    a("s_nop 15")
    a("s_mov_b32 s74, 0")
    a("K2_LOOP:")
    for t in range(8):
        if t == 6:
            a("""
            s_cmp_eq_u32 s72, 0
            s_cbranch_scc1 K2_NOBAR
            s_waitcnt vmcnt(0)
            s_barrier
            s_mov_b32 s72, 0
            K2_NOBAR:
            """)
        tile(a, t)
    a(f"""
    v_add_u32 v{AK1}, 8192, v{AK1}
    v_add_u32 v{AK2}, 2048, v{AK2}
    v_add_u32 v{AV}, 10240, v{AV}
    s_add_u32 s74, s74, 1
    s_cmp_lt_u32 s74, 8
    s_cbranch_scc1 K2_LOOP
    s_nop 1
    """)
    mf16(a, O, VB[1] + 4, P + 4, vr(O, 16))
    a("s_waitcnt lgkmcnt(0)")
    a("s_nop 15")
    a(f"v_mov_b32 v{T1}, 0")
    for r in range(12):
        a(f"v_fma_f32 v{T1}, v{O+r}, 0, v{T1}")
    a(f"""
    v_mov_b32 v{T2}, 0x5f800000
    v_cmp_gt_u32 vcc, 32, v{LN}
    s_nop 1
    v_cndmask_b32 v{T0}, v{O+8}, 0, vcc
    v_add_f32 v{T0}, v{T0}, v{T1}
    v_cmp_nle_f32 vcc, v{T0}, v{T2}
    s_nop 4
    s_cbranch_vccz K2_FIN
    s_cmp_eq_u32 s73, 0
    s_cbranch_scc0 K2_FIN
    s_mov_b32 s73, 1
    """)
    a(f"""
    v_lshlrev_b32 v{AK1}, 4, v{LN}
    v_and_b32 v2, 31, v{LN}
    v_lshlrev_b32 v{AK2}, 3, v2
    v_add_u32 v{AK2}, {LDS_K2}, v{AK2}
    v_mov_b32 v{T0}, 0x{NEGINF:x}
    s_mov_b32 s74, 0
    K2_MAXLOOP:
    ds_read_b128 {vr(KB1[0],4)}, v{AK1}
    ds_read_b64 {vr(KB2[0],2)}, v{AK2}
    s_waitcnt lgkmcnt(0)
    """)
    mf16(a, SS[0], KB1[0], Q1, "0")
    mf8(a, SS[0], KB2[0], Q2, vr(SS[0], 16))
    a("s_nop 15")
    for i in range(0, 16, 2):
        a(f"v_max3_f32 v{T0}, v{T0}, v{SS[0]+i}, v{SS[0]+i+1}")
    a(f"""
    v_add_u32 v{AK1}, 1024, v{AK1}
    v_add_u32 v{AK2}, 256, v{AK2}
    s_add_u32 s74, s74, 1
    s_cmp_lt_u32 s74, 64
    s_cbranch_scc1 K2_MAXLOOP
    """)
    half_bcast_max(a, T0, T1)
    a("s_branch K2_RESTART")
    a("K2_FIN:")
    out_epilogue(a, 36, 70, 71)
    a("K2_END:")
    a("s_endpgm")
    return a.text(), kd(NAME, 128)
```

```python
from common import *

NAME = "k3_proj_kernel"
TROW = [0, 8, 4, 12, 20, 28, 24, 32, 16, 36]

def gen():
    a = Asm()
    a(entry(NAME))
    a(f"""
    s_cmp_ge_u32 s2, 160
    s_cbranch_scc1 K3_END
    s_and_b32 s3, s2, 7
    s_lshr_b32 s4, s2, 3
    s_lshr_b32 s5, s3, 2
    s_and_b32 s6, s3, 3
    s_lshl_b32 s6, s6, 2
    s_and_b32 s7, s4, 3
    s_add_u32 s8, s6, s7
    s_lshr_b32 s9, s4, 2
    s_mul_i32 s10, s5, 24
    s_add_u32 s12, s0, s10
    s_addc_u32 s13, s1, 0
    s_load_dwordx2 s[18:19], s[12:13], 16
    s_load_dwordx2 s[16:17], s[0:1], 48
    s_load_dwordx2 s[20:21], s[0:1], 64
    v_lshrrev_b32 v1, 6, v0
    v_and_b32 v2, 63, v0
    s_nop 0
    v_readfirstlane_b32 s11, v1
    s_waitcnt lgkmcnt(0)
    """)
    srd(a, 28, 18, 19, WOB)
    a("s_cmp_ge_u32 s11, 4")
    a("s_cbranch_scc0 K3_COMPUTE")
    a(f"""
    s_sub_u32 s12, s11, 4
    v_lshrrev_b32 v5, 4, v2
    v_mul_u32_u24 v4, 1280, v5
    v_lshlrev_b32 v6, 2, v5
    v_and_b32 v7, 15, v2
    v_xor_b32 v7, v7, v6
    v_lshlrev_b32 v7, 4, v7
    v_add_u32 v11, v4, v7
    s_mul_i32 s34, s12, {40*1280}
    s_lshl_b32 s15, s9, 8
    s_add_u32 s34, s34, s15
    s_mul_i32 s35, s12, 10240
    """)
    for j in range(4):
        for i in range(10):
            a(f"s_add_u32 m0, s35, {j*40960 + i*1024}")
            a(f"s_add_u32 s36, s34, {(j*160 + TROW[i])*1280}")
            a(f"buffer_load_dwordx4 v11, s[28:31], s36 offen lds")
    for j in range(4):
        a(f"s_waitcnt vmcnt({30 - 10*j})")
        a("s_barrier")
    a("s_barrier")
    a("s_endpgm")
    a("K3_COMPUTE:")
    ACC = 0
    FW = [64, 80]
    FX = 96
    BW = 128
    LN = 140
    a(f"""
    v_mov_b32 v{LN}, v2
    s_mul_i32 s43, s5, {SEC}
    s_add_u32 s43, s43, {WS_O[0]}
    s_add_u32 s44, s20, s43
    s_addc_u32 s45, s21, 0
    """)
    srd(a, 24, 44, 45, SEC)
    a(f"""
    s_lshl_b32 s46, s8, 2
    s_add_u32 s46, s46, s11
    s_mul_i32 s47, s46, 40960
    v_lshlrev_b32 v141, 4, v2
    """)
    for s in range(8):
        a(f"s_add_u32 s48, s47, {s*1024}")
        a(f"buffer_load_dwordx4 {vr(FX+4*s,4)}, v141, s[24:27], s48 offen")
    a(f"""
    v_lshrrev_b32 v4, 5, v2
    v_and_b32 v5, 15, v2
    v_lshrrev_b32 v6, 2, v5
    v_lshlrev_b32 v7, 3, v4
    v_add_u32 v7, v7, v6
    v_lshlrev_b32 v7, 8, v7
    v_bfe_u32 v8, v2, 4, 1
    v_lshlrev_b32 v8, 5, v8
    v_add_u32 v7, v7, v8
    v_and_b32 v8, 3, v5
    v_lshlrev_b32 v8, 3, v8
    v_add_u32 v7, v7, v8
    """)
    for f in range(4):
        a(f"v_xor_b32 v8, {f}, v6")
        a(f"v_lshlrev_b32 v8, 6, v8")
        a(f"v_add_u32 v{BW+f}, v7, v8")
        a(f"v_add_u32 v{BW+4+f}, 65536, v{BW+f}")
        a(f"v_add_u32 v{BW+8+f}, 131072, v{BW+f}")
    for r in range(64):
        a(f"v_mov_b32 v{ACC+r}, 0")
    def reads(s):
        fs = s & 1
        R = []
        for f in range(4):
            for half in range(2):
                off = (16*s + 4*half) * 256
                bs, o = divmod(off, 65536)
                R.append(f"ds_read_b64_tr_b16 {vr(FW[fs]+4*f+2*half,2)}, v{BW+4*bs+f} offset:{o}")
        return R
    a("s_barrier")
    for r in reads(0): a(r)
    for s in range(40):
        fs = s & 1
        a("s_waitcnt lgkmcnt(0)")
        if s % 10 == 9 and s < 39:
            a("s_barrier")
        inflight = min(8, 40 - s)
        a(f"s_waitcnt vmcnt({inflight - 1})")
        R = reads(s + 1) if s + 1 < 40 else []
        x = vr(FX + 4*(s % 8), 4)
        for f in range(4):
            acc = vr(ACC + 16*f, 16)
            a(f"v_mfma_f32_32x32x16_bf16 {acc}, {vr(FW[fs]+4*f,4)}, {x}, {acc}")
            for r in R[2*f:2*f+2]: a(r)
        if s + 8 < 40:
            a(f"s_add_u32 s48, s47, {(s+8)*1024}")
            a(f"buffer_load_dwordx4 {x}, v141, s[24:27], s48 offen")
    a("s_nop 15")
    a("s_barrier")
    a(f"""
    v_and_b32 v64, 31, v{LN}
    v_lshrrev_b32 v65, 5, v{LN}
    v_and_b32 v66, 15, v64
    v_lshlrev_b32 v67, 8, v64
    s_lshl_b32 s49, s11, 13
    v_add_u32 v67, s49, v67
    """)
    for f in range(4):
        for u in range(2):
            t = 72 + 4*((2*f+u) % 4)
            acc = ACC + 16*f + 8*u
            for j in range(4):
                a(f"v_cvt_pk_bf16_f32 v{t+j}, v{acc+2*j}, v{acc+2*j+1}")
            a(f"v_add_u32 v68, {4*f+2*u}, v65")
            a(f"v_xor_b32 v68, v68, v66")
            a(f"v_permlane32_swap_b32 v{t}, v{t+2}")
            a(f"v_permlane32_swap_b32 v{t+1}, v{t+3}")
            a(f"v_lshl_add_u32 v68, v68, 4, v67")
            a(f"ds_write_b128 v68, {vr(t,4)}")
    a("s_waitcnt lgkmcnt(0)")
    srd(a, 52, 16, 17, OUTB)
    a(f"""
    v_lshrrev_b32 v64, 4, v{LN}
    v_and_b32 v65, 15, v{LN}
    s_lshl_b32 s50, s46, 5
    s_mul_i32 s50, s50, 2560
    s_mul_i32 s51, s5, 1280
    s_add_u32 s50, s50, s51
    s_lshl_b32 s51, s9, 8
    s_add_u32 s50, s50, s51
    v_mul_u32_u24 v66, 2560, v64
    v_lshl_add_u32 v66, v65, 4, v66
    """)
    for i in range(8):
        a(f"v_add_u32 v68, {4*i}, v64")
        a(f"v_and_b32 v69, 15, v68")
        a(f"v_xor_b32 v69, v69, v65")
        a(f"v_lshlrev_b32 v68, 8, v68")
        a(f"v_lshl_add_u32 v68, v69, 4, v68")
        a(f"v_add_u32 v68, s49, v68")
        a(f"ds_read_b128 {vr(96+4*i,4)}, v68")
    for i in range(8):
        a(f"s_waitcnt lgkmcnt({7-i})")
        a(f"s_add_u32 s51, s50, {4*i*2560}")
        a(f"buffer_store_dwordx4 {vr(96+4*i,4)}, v66, s[52:55], s51 offen")
    a("K3_END:")
    a("s_endpgm")
    return a.text(), kd(NAME, 144)
```

```python
import sys, importlib
sys.path.insert(0, "gen")
import k1, k2, k3
HDR = open("concat_heads__softmax_full_mha__sliding_local_dilated__prompt.s.ref").read().split("; Override")[0]
def build(path):
    parts = [(k1, (256, 512, 147456)), (k2, (256, 768, 163840)), (k3, (256, 512, 122880))]
    s = HDR
    for m, (g, b, l) in parts:
        s += f"; @launch kernel={m.NAME} grid=({g},1,1) block=({b},1,1) lds={l}\n"
    s += '.amdgcn_target "amdgcn-amd-amdhsa--gfx950"\n.text\n'
    kds = ""
    for m, _ in parts:
        t, k = m.gen()
        s += t; kds += k
    s += '.section .rodata,"a"\n' + kds
    open(path, "w").write(s)
if __name__ == "__main__":
    build(sys.argv[1] if len(sys.argv) > 1 else "concat_heads__softmax_full_mha__sliding_local_dilated__prompt.s")
```

```python
class Asm:
    def __init__(self):
        self.L = []
    def __call__(self, s):
        for x in s.strip("\n").split("\n"):
            self.L.append(x.strip() if not x.strip().endswith(":") else x.strip())
    def text(self):
        return "\n".join(("" if l.endswith(":") else "    ") + l for l in self.L) + "\n"

def vr(b, n):
    return f"v[{b}:{b+n-1}]" if n > 1 else f"v{b}"
def sr(b, n):
    return f"s[{b}:{b+n-1}]" if n > 1 else f"s{b}"

S, D, H, DH = 2048, 640, 32, 20
XB = S * D * 2
WB = D * 3 * D * 2
WOB = D * D * 2
OUTB = S * 2 * D * 2
SEC = 64 * 40960
WS_QK = [0, 2 * SEC]
WS_V = [4 * SEC, 5 * SEC]
WS_O = [6 * SEC, 7 * SEC]
WS_END = 8 * SEC
WS_WP = 8 * SEC
CQ = (20 ** -0.5) * 1.4426950408889634

def f32bits(x):
    import struct
    return struct.unpack("<I", struct.pack("<f", x))[0]

def kd(name, vgpr, sgpr=96):
    acc = (vgpr + 3) // 4 * 4
    return f""".p2align 6
.amdhsa_kernel {name}
  .amdhsa_next_free_vgpr {vgpr}
  .amdhsa_next_free_sgpr {sgpr}
  .amdhsa_accum_offset {acc}
  .amdhsa_group_segment_fixed_size 0
  .amdhsa_kernarg_size 72
  .amdhsa_user_sgpr_count 2
  .amdhsa_user_sgpr_kernarg_segment_ptr 1
  .amdhsa_system_sgpr_workgroup_id_x 1
.end_amdhsa_kernel
"""
def entry(name):
    return f".globl {name}\n.p2align 8\n.type {name},@function\n{name}:\n"

def srd(a, d, lo, hi, nbytes):
    a(f"s_mov_b32 s{d}, s{lo}")
    a(f"s_and_b32 s{d+1}, s{hi}, 0xffff")
    a(f"s_mov_b32 s{d+2}, {nbytes}")
    a(f"s_mov_b32 s{d+3}, 0x20000")

import os
STAMP = bool(int(os.environ.get("STAMP", "0")))
STAMP_BASE = 9 * SEC
def stamp(a, idx):
    if STAMP:
        a(f"s_memtime s[{80+2*idx}:{81+2*idx}]")
def stamp_real(a, idx):
    if STAMP:
        a(f"s_memrealtime s[{80+2*idx}:{81+2*idx}]")
def stamp_flush(a, kidx, n, wavereg, wsreg_lo, wave_sel=0, slot=None):
    if not STAMP: return
    lab = f"STAMP_SKIP_{kidx}_{wave_sel}_{stamp_flush.c}"; stamp_flush.c += 1
    a(f"s_waitcnt lgkmcnt(0)")
    a(f"s_cmp_eq_u32 s{wavereg}, {wave_sel}")
    a(f"s_cbranch_scc0 {lab}")
    a(f"s_add_u32 s76, s{wsreg_lo}, {STAMP_BASE + kidx*256*256 + (wave_sel if slot is None else slot)*128}")
    a(f"s_addc_u32 s77, s{wsreg_lo+1}, 0")
    a(f"s_and_b32 s77, s77, 0xffff")
    a(f"s_mov_b32 s78, 65536")
    a(f"s_mov_b32 s79, 0x20000")
    a(f"s_lshl_b32 s75, s2, 8")
    a(f"v_mov_b32 v2, s75")
    for i in range(n):
        a(f"v_mov_b32 v3, s{80+2*i}")
        a(f"buffer_store_dword v3, v2, s[76:79], 0 offen offset:{8*i}")
        a(f"v_mov_b32 v3, s{81+2*i}")
        a(f"buffer_store_dword v3, v2, s[76:79], 0 offen offset:{8*i+4}")
    a(f"{lab}:")
stamp_flush.c = 0

STF = os.environ.get("STF", "")
PRIO = int(os.environ.get("PRIO", "8"))
ROT = int(os.environ.get("ROT", "4"))
EARLY = int(os.environ.get("EARLY", "4"))
```

```python
from common import *

NAME = "k1_qkv_kernel"
BUF = 49152
WOFF = 32768

def gen():
    a = Asm()
    a(entry(NAME))
    a(f"""
    s_cmp_ge_u32 s2, 256
    s_cbranch_scc1 K1_END
    s_and_b32 s3, s2, 7
    s_lshr_b32 s4, s2, 3
    s_lshr_b32 s5, s3, 2
    s_bfe_u32 s6, s3, 0x10001
    s_and_b32 s7, s3, 1
    s_and_b32 s8, s4, 3
    s_lshl_b32 s6, s6, 2
    s_add_u32 s8, s8, s6
    s_lshr_b32 s9, s4, 2
    s_lshl_b32 s7, s7, 3
    s_add_u32 s9, s9, s7
    s_cmp_ge_u32 s9, 15
    s_cbranch_scc1 K1_END
    s_mul_i32 s10, s5, 24
    s_add_u32 s12, s0, s10
    s_addc_u32 s13, s1, 0
    s_load_dwordx4 s[16:19], s[12:13], 0
    s_load_dwordx2 s[20:21], s[0:1], 64
    """)
    stamp(a, 0); stamp_real(a, 1)
    a(f"""
    v_lshrrev_b32 v1, 6, v0
    v_and_b32 v2, 63, v0
    s_nop 0
    v_readfirstlane_b32 s11, v1
    s_waitcnt lgkmcnt(0)
    """)
    srd(a, 24, 16, 17, XB)
    srd(a, 28, 18, 19, WB)
    a("s_cmp_ge_u32 s11, 4")
    a("s_cbranch_scc0 K1_COMPUTE")
    a(f"""
    s_sub_u32 s12, s11, 4
    v_lshrrev_b32 v3, 3, v2
    v_mul_u32_u24 v4, 1280, v3
    v_lshrrev_b32 v5, 4, v2
    s_and_b32 s13, s12, 1
    s_lshl_b32 s13, s13, 2
    v_add_u32 v6, s13, v5
    v_and_b32 v7, 7, v2
    v_xor_b32 v7, v7, v6
    v_lshlrev_b32 v7, 4, v7
    v_add_u32 v10, v4, v7
    v_mul_u32_u24 v4, 3840, v5
    v_lshlrev_b32 v6, 2, v5
    v_and_b32 v7, 15, v2
    v_xor_b32 v7, v7, v6
    v_lshlrev_b32 v7, 4, v7
    v_add_u32 v11, v4, v7
    s_lshl_b32 s14, s8, 8
    s_lshl_b32 s15, s12, 3
    s_add_u32 s14, s14, s15
    s_mul_i32 s33, s14, 1280
    s_mul_i32 s34, s12, {4*3840}
    s_lshl_b32 s15, s9, 8
    s_add_u32 s34, s34, s15
    s_lshl_b32 s35, s12, 10
    """)
    def issue(st):
        buf = st % 3
        for i in range(8):
            a(f"s_add_u32 m0, s35, {buf*BUF + i*4096}")
            a(f"s_add_u32 s36, s33, {st*128 + i*32*1280}")
            a(f"buffer_load_dwordx4 v10, s[24:27], s36 offen lds")
        for i in range(4):
            a(f"s_add_u32 m0, s35, {buf*BUF + WOFF + i*4096}")
            a(f"s_add_u32 s36, s34, {(st*64 + i*16)*3840}")
            a(f"buffer_load_dwordx4 v11, s[28:31], s36 offen lds")
    issue(0); issue(1)
    for st in range(10):
        a(f"s_waitcnt vmcnt({12 if st < 9 else 0})")
        a("s_barrier")
        if st + 2 < 10:
            issue(st + 2)
    a("s_endpgm")
    a("K1_COMPUTE:")
    ACC = 0
    FX = [128, 152]
    FW = [144, 168]
    BX = [176, 180]
    BW = [184, 186]
    LN = 188
    a(f"""
    v_mov_b32 v{LN}, v2
    s_lshr_b32 s12, s11, 1
    s_and_b32 s13, s11, 1
    v_and_b32 v3, 31, v2
    v_lshrrev_b32 v4, 5, v2
    s_lshl_b32 s14, s12, 7
    v_add_u32 v5, s14, v3
    v_lshlrev_b32 v5, 7, v5
    v_bfe_u32 v6, v3, 1, 3
    """)
    for s in range(4):
        a(f"v_add_u32 v7, {2*s}, v4")
        a(f"v_xor_b32 v7, v7, v6")
        a(f"v_lshlrev_b32 v7, 4, v7")
        a(f"v_add_u32 v{BX[0]+s}, v5, v7")
        a(f"v_add_u32 v{BX[1]+s}, {2*BUF}, v{BX[0]+s}")
    a(f"""
    v_and_b32 v5, 15, v2
    v_lshrrev_b32 v6, 2, v5
    v_lshlrev_b32 v7, 3, v4
    v_add_u32 v7, v7, v6
    v_lshlrev_b32 v7, 8, v7
    v_bfe_u32 v8, v2, 4, 1
    v_lshlrev_b32 v8, 5, v8
    v_add_u32 v7, v7, v8
    v_and_b32 v8, 3, v5
    v_lshlrev_b32 v8, 3, v8
    v_add_u32 v7, v7, v8
    v_add_u32 v7, {WOFF}, v7
    s_lshl_b32 s14, s13, 1
    """)
    for f in range(2):
        a(f"s_add_u32 s15, s14, {f}")
        a(f"v_xor_b32 v8, s15, v6")
        a(f"v_lshlrev_b32 v8, 6, v8")
        a(f"v_add_u32 v{BW[0]+f}, v7, v8")
        a(f"v_add_u32 v{BW[1]+f}, {2*BUF}, v{BW[0]+f}")
    for r in range(128):
        a(f"v_mov_b32 v{ACC+r}, 0")

    def reads(gs):
        st, s = divmod(gs, 4)
        buf = st % 3
        fs = gs & 1
        bs = 1 if buf == 2 else 0
        bo = 0 if buf == 2 else buf * BUF
        R = []
        for f in range(2):
            for half in range(2):
                R.append(f"ds_read_b64_tr_b16 {vr(FW[fs]+4*f+2*half,2)}, v{BW[bs]+f} offset:{bo + (16*s+4*half)*256}")
        for tb in range(4):
            R.append(f"ds_read_b128 {vr(FX[fs]+4*tb,4)}, v{BX[bs]+s} offset:{bo + tb*4096}")
        return R

    def mainloop(vtile):
        stamp(a, 2)
        a("s_barrier")
        stamp(a, 3)
        for r in reads(0): a(r)
        for gs in range(40):
            st, s = divmod(gs, 4)
            fs = gs & 1
            a("s_waitcnt lgkmcnt(0)")
            if s == 3 and st < 9:
                a("s_barrier")
            R = reads(gs + 1) if gs + 1 < 40 else []
            for i in range(8):
                tb, f = i >> 1, i & 1
                acc = vr(ACC + (tb*2+f)*16, 16)
                x = vr(FX[fs]+4*tb, 4); w = vr(FW[fs]+4*f, 4)
                if vtile:
                    a(f"v_mfma_f32_32x32x16_bf16 {acc}, {x}, {w}, {acc}")
                else:
                    a(f"v_mfma_f32_32x32x16_bf16 {acc}, {w}, {x}, {acc}")
                if i < len(R): a(R[i])
        a("s_nop 15")
        stamp(a, 4)

    def fin():
        if STAMP:
            a("s_waitcnt vmcnt(0)")
        stamp(a, 5); stamp_real(a, 6)
        stamp_flush(a, 0, 7, 11, 20, 0)

    a("s_cmp_ge_u32 s9, 10")
    a("s_cbranch_scc1 K1_VTILE")
    mainloop(False)
    a(f"""
    s_cmp_lt_u32 s9, 5
    s_cselect_b32 s40, {f32bits(CQ)}, 0x3f800000
    s_cselect_b32 s41, 0, {SEC}
    s_cselect_b32 s42, 0, 5
    s_sub_u32 s42, s9, s42
    s_mul_i32 s43, s5, {WS_QK[1]}
    s_add_u32 s41, s41, s43
    s_add_u32 s44, s20, s41
    s_addc_u32 s45, s21, 0
    """)
    srd(a, 48, 44, 45, SEC)
    a(f"""
    s_lshl_b32 s46, s8, 3
    s_lshl_b32 s47, s12, 2
    s_add_u32 s46, s46, s47
    s_mul_i32 s46, s46, 40960
    s_lshl_b32 s47, s42, 4
    s_lshl_b32 s52, s13, 3
    s_add_u32 s47, s47, s52
    s_lshl_b32 s47, s47, 9
    s_add_u32 s46, s46, s47
    v_lshlrev_b32 v189, 4, v{LN}
    """)
    T = 128
    k = 0
    for tb in range(4):
        for f in range(2):
            acc = ACC + (tb*2+f)*16
            for r in range(16):
                a(f"v_mul_f32 v{acc+r}, s40, v{acc+r}")
            for u in range(2):
                t = T + 4*(k % 4); k += 1
                for j in range(4):
                    a(f"v_cvt_pk_bf16_f32 v{t+j}, v{acc+8*u+2*j}, v{acc+8*u+2*j+1}")
                a("s_nop 1")
                a(f"v_permlane32_swap_b32 v{t}, v{t+2}")
                a(f"v_permlane32_swap_b32 v{t+1}, v{t+3}")
                a(f"s_add_u32 s53, s46, {tb*40960 + (f*4+2*u)*512}")
                a(f"buffer_store_dwordx4 {vr(t,4)}, v189, s[48:51], s53 offen {STF}")
    fin()
    a("s_endpgm")
    a("K1_VTILE:")
    mainloop(True)
    a(f"""
    s_mul_i32 s43, s5, {SEC}
    s_add_u32 s43, s43, {WS_V[0]}
    s_add_u32 s44, s20, s43
    s_addc_u32 s45, s21, 0
    """)
    srd(a, 48, 44, 45, SEC)
    a(f"""
    s_lshl_b32 s46, s8, 3
    s_lshl_b32 s47, s12, 2
    s_add_u32 s46, s46, s47
    s_mul_i32 s46, s46, 1280
    s_sub_u32 s42, s9, 10
    s_lshl_b32 s42, s42, 7
    s_lshl_b32 s47, s13, 6
    s_add_u32 s42, s42, s47
    v_and_b32 v130, 31, v{LN}
    v_lshrrev_b32 v131, 5, v{LN}
    v_mul_u32_u24 v131, 320, v131
    s_mov_b32 s52, 52429
    """)
    for f in range(2):
        a(f"""
        v_add_u32 v132, s42, v130
        v_add_u32 v132, {32*f}, v132
        v_mul_lo_u32 v133, v132, s52
        v_lshrrev_b32 v133, 20, v133
        v_mul_u32_u24 v134, 20, v133
        v_sub_u32 v134, v132, v134
        v_lshlrev_b32 v134, 4, v134
        v_add_u32 v134, v134, v131
        v_mov_b32 v135, 81920
        v_mul_lo_u32 v133, v133, v135
        v_add_u32 v{189+f}, v133, v134
        """)
    T = 136
    k = 0
    for tb in range(4):
        for f in range(2):
            acc = ACC + (tb*2+f)*16
            for u in range(2):
                t = T + 4*(k % 4); k += 1
                for j in range(4):
                    a(f"v_cvt_pk_bf16_f32 v{t+j}, v{acc+8*u+2*j}, v{acc+8*u+2*j+1}")
                a(f"s_add_u32 s53, s46, {tb*1280 + u*640}")
                a(f"buffer_store_dwordx4 {vr(t,4)}, v{189+f}, s[48:51], s53 offen {STF}")
    fin()
    a("K1_END:")
    a("s_endpgm")
    return a.text(), kd(NAME, 192, 100)
```

```python
from common import *

NAME = "k2_attn_kernel"
LN = 1
Q1, Q2 = 4, 8
AK1, AK2, AV = 10, 11, 12
T0, T1, T2 = 13, 14, 15
NEGM = 16
SS = [32, 48]
P = 64
QB1, QB2 = 72, 76
O = 80
KB1 = [96, 104]
KB2 = [100, 108]
VB = [112, 120]
LDS_K2 = 65536
LDS_V = 81920
NEGINF = 0xff800000

def mf16(a, d, x, y, c):
    a(f"v_mfma_f32_32x32x16_bf16 {vr(d,16)}, {vr(x,4)}, {vr(y,4)}, {c}")
def mf8(a, d, x, y, c):
    a(f"v_mfma_f32_32x32x8_bf16 {vr(d,16)}, {vr(x,2)}, {vr(y,2)}, {c}")

def half_bcast_max(a, v, t):
    a(f"v_mov_b32 v{t}, v{v}")
    a("s_nop 1")
    a(f"v_permlane32_swap_b32 v{v}, v{t}")
    a("s_nop 1")
    a(f"v_max_f32 v{v}, v{v}, v{t}")

def out_epilogue(a, srd_o, soff_main, soff_rem):
    a(f"""
    v_mov_b32 v{T0}, v{O+8}
    v_mov_b32 v{T1}, v{O+8}
    s_nop 1
    v_permlane32_swap_b32 v{T0}, v{T1}
    s_nop 1
    v_rcp_f32 v{T1}, v{T1}
    s_nop 1
    """)
    for r in range(12):
        a(f"v_mul_f32 v{O+r}, v{O+r}, v{T1}")
    for j in range(6):
        a(f"v_cvt_pk_bf16_f32 v{P+j}, v{O+2*j}, v{O+2*j+1}")
    a(f"""
    v_lshlrev_b32 v{T0}, 4, v{LN}
    buffer_store_dwordx4 {vr(P,4)}, v{T0}, s[{srd_o}:{srd_o+3}], s{soff_main} offen {STF}
    v_mov_b32 v{T2}, 0x40000000
    v_cmp_gt_u32 vcc, 32, v{LN}
    s_nop 1
    v_cndmask_b32 v{T2}, v{T2}, v{T0}, vcc
    buffer_store_dwordx2 {vr(P+4,2)}, v{T2}, s[{srd_o}:{srd_o+3}], s{soff_rem} offen {STF}
    """)

def tile(a, t, first_bar=False, last=False):
    c, n = t & 1, (t + 1) & 1
    Sc, Sn = SS[c], SS[n]
    E = lambda i: a(f"v_exp_f32 v{Sc+i}, v{Sc+i}")
    C = lambda j: a(f"v_cvt_pk_bf16_f32 v{P+j}, v{Sc+2*j}, v{Sc+2*j+1}")
    a("s_waitcnt lgkmcnt(0)")
    mf16(a, Sn, KB1[n], Q1, vr(NEGM, 16))
    E(0); E(1)
    mf16(a, O, VB[n] + 4, P + 4, vr(O, 16))
    a("s_mov_b64 exec, s[60:61]")
    a(f"ds_read_b128 {vr(VB[n],4)}, v{AV} offset:{(t+1)*1280}")
    a(f"ds_read_b128 {vr(VB[n]+4,4)}, v{AV} offset:{(t+1)*1280+640}")
    a("s_mov_b64 exec, -1")
    E(2); E(3); C(0); E(4); C(1)
    mf8(a, Sn, KB2[n], Q2, vr(Sn, 16))
    a(f"ds_read_b128 {vr(KB1[c],4)}, v{AK1} offset:{(t+2)*1024}")
    a(f"ds_read_b64 {vr(KB2[c],2)}, v{AK2} offset:{(t+2)*256}")
    E(5); E(6); E(7); C(2); E(8); C(3); E(9); E(10)
    mf16(a, O, VB[c], P, vr(O, 16))
    E(11); C(4); E(12); E(13); C(5); E(14); E(15); C(6)
    a("s_nop 0")
    C(7)

def gen():
    a = Asm()
    a(entry(NAME))
    a(f"""
    s_cmp_ge_u32 s2, 256
    s_cbranch_scc1 K2_END
    s_load_dwordx2 s[20:21], s[0:1], 64
    """)
    stamp(a, 0); stamp_real(a, 1)
    a(f"""
    s_and_b32 s3, s2, 7
    s_lshr_b32 s4, s2, 3
    s_and_b32 s5, s4, 3
    s_lshl_b32 s3, s3, 2
    s_add_u32 s5, s5, s3
    s_lshr_b32 s6, s4, 2
    v_lshrrev_b32 v2, 6, v0
    v_and_b32 v{LN}, 63, v0
    s_nop 0
    v_readfirstlane_b32 s7, v2
    s_lshl_b32 s8, s6, 3
    s_add_u32 s8, s8, s7
    s_lshr_b32 s9, s5, 1
    s_and_b32 s10, s5, 1
    s_mul_i32 s11, s9, 5
    s_mul_i32 s12, s10, 3
    s_add_u32 s12, s12, s11
    s_lshl_b32 s12, s12, 9
    s_add_u32 s13, s11, 2
    s_lshl_b32 s13, s13, 9
    s_lshl_b32 s14, s10, 3
    s_add_u32 s13, s13, s14
    s_mul_i32 s15, s8, 40960
    s_mul_i32 s16, s5, 81920
    s_waitcnt lgkmcnt(0)
    """)
    def mk(d, off):
        a(f"s_add_u32 s22, s20, {off}")
        a(f"s_addc_u32 s23, s21, 0")
        srd(a, d, 22, 23, SEC)
    mk(24, WS_QK[0]); mk(28, WS_QK[0] + SEC); mk(32, WS_V[0]); mk(36, WS_O[0])
    mk(40, WS_QK[1]); mk(44, WS_QK[1] + SEC); mk(48, WS_V[1]); mk(52, WS_O[1])
    a(f"""
    v_and_b32 v2, 31, v{LN}
    v_lshrrev_b32 v3, 5, v{LN}
    v_lshlrev_b32 v{AK1}, 4, v{LN}
    v_lshlrev_b32 v{T0}, 4, v2
    v_mov_b32 v{T1}, 0x40000000
    v_cmp_gt_u32 vcc, 32, v{LN}
    s_nop 1
    v_cndmask_b32 v{T1}, v{T1}, v{T0}, vcc
    v_mul_u32_u24 v{AV}, 320, v3
    v_add_u32 v{AV}, v{AV}, v{T0}
    v_cmp_gt_u32 s[60:61], 20, v2
    v_cmp_eq_u32 vcc, 20, v2
    v_mov_b32 v{T2}, 0x3f803f80
    s_nop 0
    v_cndmask_b32 v{T2}, 0, v{T2}, vcc
    """)
    for r in range(16):
        a(f"v_mov_b32 v{VB[0]+r}, v{T2}")
    a(f"""
    s_cmp_eq_u32 s8, 0
    s_cselect_b32 s17, 0, 1
    s_sub_u32 s18, s8, s17
    s_mul_i32 s19, s18, 40960
    s_add_u32 s62, s15, s12
    buffer_load_dwordx4 {vr(QB1,4)}, v{AK1}, s[40:43], s62 offen
    buffer_load_dwordx4 {vr(KB1[0],4)}, v{AK1}, s[44:47], s62 offen
    s_add_u32 s62, s15, s13
    buffer_load_dwordx2 {vr(QB2,2)}, v{T1}, s[40:43], s62 offen
    buffer_load_dwordx2 {vr(KB2[0],2)}, v{T0}, s[44:47], s62 offen
    s_add_u32 s62, s19, s12
    buffer_load_dwordx4 {vr(KB1[1],4)}, v{AK1}, s[44:47], s62 offen
    s_add_u32 s62, s19, s13
    buffer_load_dwordx2 {vr(KB2[1],2)}, v{T0}, s[44:47], s62 offen
    s_mul_i32 s63, s8, 1280
    s_add_u32 s63, s63, s16
    s_mul_i32 s64, s18, 1280
    s_add_u32 s64, s64, s16
    s_mov_b64 exec, s[60:61]
    buffer_load_dwordx4 {vr(VB[0],4)}, v{AV}, s[48:51], s63 offen
    buffer_load_dwordx4 {vr(VB[0]+4,4)}, v{AV}, s[48:51], s63 offen offset:640
    buffer_load_dwordx4 {vr(VB[1],4)}, v{AV}, s[48:51], s64 offen offset:640
    s_mov_b64 exec, -1
    """)
    a(f"""
    s_add_u32 s62, s15, s12
    buffer_load_dwordx4 {vr(Q1,4)}, v{AK1}, s[24:27], s62 offen
    s_add_u32 s62, s15, s13
    buffer_load_dwordx2 {vr(Q2,2)}, v{T1}, s[24:27], s62 offen
    """)
    a(f"""
    v_lshrrev_b32 v2, 1, v{LN}
    v_lshlrev_b32 v2, 4, v2
    v_and_b32 v3, 1, v{LN}
    v_lshlrev_b32 v3, 2, v3
    v_add_u32 v2, v2, v3
    s_mul_i32 s65, s7, 40960
    s_add_u32 s66, s65, s13
    s_add_u32 s65, s65, s12
    s_lshl_b32 s67, s7, 10
    s_add_u32 s68, s67, s16
    s_lshl_b32 s69, s7, 8
    """)
    def dK(r):
        a(f"s_add_u32 m0, s67, {r*8192}")
        a(f"s_add_u32 s62, s65, {r*8*40960}")
        a(f"buffer_load_dwordx4 v{AK1}, s[28:31], s62 offen lds")
        a(f"s_add_u32 m0, s69, {LDS_K2 + r*2048}")
        a(f"s_add_u32 s62, s66, {r*8*40960}")
        a(f"buffer_load_dword v2, s[28:31], s62 offen lds")
    def dV(i):
        a(f"s_add_u32 m0, s67, {LDS_V + i*8192}")
        a(f"s_add_u32 s62, s68, {i*8192}")
        a(f"buffer_load_dwordx4 v{AK1}, s[32:35], s62 offen lds")
    dK(0); dV(0); dV(1)
    for r in range(1, 8):
        dK(r); dV(r + 1)
    dV(9)
    a(f"""
    v_and_b32 v2, 31, v{LN}
    v_lshlrev_b32 v{AK2}, 3, v2
    v_add_u32 v{AK2}, {LDS_K2}, v{AK2}
    v_add_u32 v{AV}, {LDS_V}, v{AV}
    """)
    a(f"""
    v_add_u32 v3, 18, v2
    v_mov_b32 v16, 0x5555
    v_mov_b32 v17, 0
    v_lshlrev_b64 v[16:17], v3, v[16:17]
    v_lshrrev_b32 v3, 5, v{LN}
    v_lshlrev_b32 v3, 2, v3
    v_lshrrev_b64 v[16:17], v3, v[16:17]
    s_sub_u32 s62, 0, s17
    v_and_b32 v16, s62, v16
    v_not_b32 v16, v16
    v_not_b32 v17, v17
    """)
    for g in range(4):
        for r in range(4):
            a(f"v_bfe_i32 v{SS[0]+4*g+r}, v17, {8*g+r}, 1")
            a(f"v_lshlrev_b32 v{SS[0]+4*g+r}, 23, v{SS[0]+4*g+r}")
    for g in range(4):
        for r in range(4):
            if g < 2:
                a(f"v_mov_b32 v{SS[1]+4*g+r}, 0x{NEGINF:x}")
            else:
                a(f"v_bfe_i32 v{SS[1]+4*g+r}, v16, {8*g+r}, 1")
                a(f"v_lshlrev_b32 v{SS[1]+4*g+r}, 23, v{SS[1]+4*g+r}")
    a("s_waitcnt vmcnt(28)")
    stamp(a, 2)
    mf16(a, SS[0], KB1[0], QB1, vr(SS[0], 16))
    mf16(a, SS[1], KB1[1], QB1, vr(SS[1], 16))
    mf8(a, SS[0], KB2[0], QB2, vr(SS[0], 16))
    mf8(a, SS[1], KB2[1], QB2, vr(SS[1], 16))
    a("s_nop 15")
    regs = [SS[0] + i for i in range(16)] + [SS[1] + 8 + i for i in range(8)]
    a(f"v_max3_f32 v{T0}, v{regs[0]}, v{regs[1]}, v{regs[2]}")
    for i in range(3, 23, 2):
        a(f"v_max3_f32 v{T0}, v{T0}, v{regs[i]}, v{regs[i+1]}")
    a(f"v_max_f32 v{T0}, v{T0}, v{regs[23]}")
    half_bcast_max(a, T0, T1)
    for r in regs:
        a(f"v_sub_f32 v{r}, v{r}, v{T0}")
    for r in regs:
        a(f"v_exp_f32 v{r}, v{r}")
    a("s_nop 0")
    for j in range(8):
        a(f"v_cvt_pk_bf16_f32 v{P+j}, v{SS[0]+2*j}, v{SS[0]+2*j+1}")
    for j in range(4):
        a(f"v_cvt_pk_bf16_f32 v{QB1+j}, v{SS[1]+8+2*j}, v{SS[1]+8+2*j+1}")
    a("s_nop 1")
    mf16(a, O, VB[0], P, "0")
    mf16(a, O, VB[0] + 4, P + 4, vr(O, 16))
    mf16(a, O, VB[1], QB1, vr(O, 16))
    a(f"""
    s_lshl_b32 s62, s10, 1
    s_add_u32 s62, s62, s11
    s_lshl_b32 s62, s62, 9
    s_add_u32 s70, s62, s15
    s_add_u32 s62, s11, 4
    s_lshl_b32 s62, s62, 9
    s_add_u32 s62, s62, s14
    s_add_u32 s71, s62, s15
    s_nop 15
    """)
    out_epilogue(a, 52, 70, 71)
    stamp(a, 3)
    a("s_waitcnt vmcnt(22)")
    a("s_barrier")
    stamp(a, 4)
    a("s_mov_b32 s72, 1")
    a("s_mov_b32 s73, 0")
    a(f"""
    ds_read_b128 {vr(KB1[0],4)}, v{AK1}
    ds_read_b64 {vr(KB2[0],2)}, v{AK2}
    s_waitcnt lgkmcnt(0)
    """)
    mf16(a, SS[0], KB1[0], Q1, "0")
    mf8(a, SS[0], KB2[0], Q2, vr(SS[0], 16))
    a("s_nop 15")
    a(f"v_max3_f32 v{T0}, v{SS[0]}, v{SS[0]+1}, v{SS[0]+2}")
    for i in range(3, 15, 2):
        a(f"v_max3_f32 v{T0}, v{T0}, v{SS[0]+i}, v{SS[0]+i+1}")
    a(f"v_max_f32 v{T0}, v{T0}, v{SS[0]+15}")
    half_bcast_max(a, T0, T1)
    a("K2_RESTART:")
    for r in range(16):
        a(f"v_sub_f32 v{NEGM+r}, 0, v{T0}")
    for r in range(16):
        a(f"v_mov_b32 v{O+r}, 0")
    for r in range(4):
        a(f"v_mov_b32 v{P+4+r}, 0")
    a(f"""
    v_lshlrev_b32 v{AK1}, 4, v{LN}
    v_and_b32 v2, 31, v{LN}
    v_lshlrev_b32 v{AK2}, 3, v2
    v_add_u32 v{AK2}, {LDS_K2}, v{AK2}
    v_lshrrev_b32 v3, 5, v{LN}
    v_mul_u32_u24 v{AV}, 320, v3
    v_lshlrev_b32 v2, 4, v2
    v_add_u32 v{AV}, v{AV}, v2
    v_add_u32 v{AV}, {LDS_V}, v{AV}
    ds_read_b128 {vr(KB1[0],4)}, v{AK1}
    ds_read_b64 {vr(KB2[0],2)}, v{AK2}
    ds_read_b128 {vr(KB1[1],4)}, v{AK1} offset:1024
    ds_read_b64 {vr(KB2[1],2)}, v{AK2} offset:256
    s_mov_b64 exec, s[60:61]
    ds_read_b128 {vr(VB[0],4)}, v{AV}
    ds_read_b128 {vr(VB[0]+4,4)}, v{AV} offset:640
    ds_read_b128 {vr(VB[1]+4,4)}, v{AV} offset:640
    s_mov_b64 exec, -1
    s_waitcnt lgkmcnt(0)
    """)
    mf16(a, SS[0], KB1[0], Q1, vr(NEGM, 16))
    mf8(a, SS[0], KB2[0], Q2, vr(SS[0], 16))
    a("s_nop 15")
    a("s_mov_b32 s74, 0")
    if PRIO:
        a("s_cmp_ge_u32 s7, 4\ns_cbranch_scc0 K2_NOPRIO\ns_setprio 1\nK2_NOPRIO:")
    stamp(a, 5)
    a("K2_LOOP:")
    for t in range(8):
        if t == 6:
            a("""
            s_cmp_eq_u32 s72, 0
            s_cbranch_scc1 K2_NOBAR
            s_waitcnt vmcnt(0)
            s_barrier
            s_mov_b32 s72, 0
            K2_NOBAR:
            """)
        tile(a, t)
    a(f"""
    v_add_u32 v{AK1}, 8192, v{AK1}
    v_add_u32 v{AK2}, 2048, v{AK2}
    v_add_u32 v{AV}, 10240, v{AV}
    s_add_u32 s74, s74, 1
    s_cmp_lt_u32 s74, 8
    s_cbranch_scc1 K2_LOOP
    s_nop 1
    """)
    mf16(a, O, VB[1] + 4, P + 4, vr(O, 16))
    a("s_waitcnt lgkmcnt(0)")
    a("s_nop 15")
    a(f"v_mov_b32 v{T1}, 0")
    for r in range(12):
        a(f"v_fma_f32 v{T1}, v{O+r}, 0, v{T1}")
    a(f"""
    v_mov_b32 v{T2}, 0x5f800000
    v_cmp_gt_u32 vcc, 32, v{LN}
    s_nop 1
    v_cndmask_b32 v{T0}, v{O+8}, 0, vcc
    v_add_f32 v{T0}, v{T0}, v{T1}
    v_cmp_nle_f32 vcc, v{T0}, v{T2}
    s_nop 4
    s_cbranch_vccz K2_FIN
    s_cmp_eq_u32 s73, 0
    s_cbranch_scc0 K2_FIN
    s_mov_b32 s73, 1
    """)
    a(f"""
    v_lshlrev_b32 v{AK1}, 4, v{LN}
    v_and_b32 v2, 31, v{LN}
    v_lshlrev_b32 v{AK2}, 3, v2
    v_add_u32 v{AK2}, {LDS_K2}, v{AK2}
    v_mov_b32 v{T0}, 0x{NEGINF:x}
    s_mov_b32 s74, 0
    K2_MAXLOOP:
    ds_read_b128 {vr(KB1[0],4)}, v{AK1}
    ds_read_b64 {vr(KB2[0],2)}, v{AK2}
    s_waitcnt lgkmcnt(0)
    """)
    mf16(a, SS[0], KB1[0], Q1, "0")
    mf8(a, SS[0], KB2[0], Q2, vr(SS[0], 16))
    a("s_nop 15")
    for i in range(0, 16, 2):
        a(f"v_max3_f32 v{T0}, v{T0}, v{SS[0]+i}, v{SS[0]+i+1}")
    a(f"""
    v_add_u32 v{AK1}, 1024, v{AK1}
    v_add_u32 v{AK2}, 256, v{AK2}
    s_add_u32 s74, s74, 1
    s_cmp_lt_u32 s74, 64
    s_cbranch_scc1 K2_MAXLOOP
    """)
    half_bcast_max(a, T0, T1)
    a("s_branch K2_RESTART")
    a("K2_FIN:")
    stamp(a, 6)
    out_epilogue(a, 36, 70, 71)
    if STAMP:
        a("s_waitcnt vmcnt(0)")
    stamp(a, 7); stamp_real(a, 8)
    stamp_flush(a, 1, 9, 7, 20, 0)
    stamp_flush(a, 1, 9, 7, 20, 1)
    a("K2_END:")
    a("s_endpgm")
    return a.text(), kd(NAME, 128, 100)
```

```python
from common import *

NAME = "k3_proj_kernel"
TROW = [0, 8, 4, 12, 20, 28, 24, 32, 16, 36]

def gen():
    a = Asm()
    a(entry(NAME))
    a(f"""
    s_cmp_ge_u32 s2, 160
    s_cbranch_scc1 K3_END
    s_and_b32 s3, s2, 7
    s_lshr_b32 s4, s2, 3
    s_lshr_b32 s5, s3, 2
    s_and_b32 s6, s3, 3
    s_lshl_b32 s6, s6, 2
    s_and_b32 s7, s4, 3
    s_add_u32 s8, s6, s7
    s_lshr_b32 s9, s4, 2
    s_mul_i32 s10, s5, 24
    s_add_u32 s12, s0, s10
    s_addc_u32 s13, s1, 0
    s_load_dwordx2 s[18:19], s[12:13], 16
    s_load_dwordx2 s[16:17], s[0:1], 48
    s_load_dwordx2 s[20:21], s[0:1], 64
    """)
    stamp(a, 0); stamp_real(a, 1)
    a(f"""
    v_lshrrev_b32 v1, 6, v0
    v_and_b32 v2, 63, v0
    s_nop 0
    v_readfirstlane_b32 s11, v1
    s_waitcnt lgkmcnt(0)
    """)
    srd(a, 28, 18, 19, WOB)
    a("s_cmp_ge_u32 s11, 4")
    a("s_cbranch_scc0 K3_COMPUTE")
    a(f"""
    s_sub_u32 s12, s11, 4
    v_lshrrev_b32 v5, 4, v2
    v_mul_u32_u24 v4, 1280, v5
    v_lshlrev_b32 v6, 2, v5
    v_and_b32 v7, 15, v2
    v_xor_b32 v7, v7, v6
    v_lshlrev_b32 v7, 4, v7
    v_add_u32 v11, v4, v7
    s_mul_i32 s34, s12, {40*1280}
    s_lshl_b32 s15, s9, 8
    s_add_u32 s34, s34, s15
    s_mul_i32 s35, s12, 10240
    """)
    for j in range(4):
        for i in range(10):
            a(f"s_add_u32 m0, s35, {j*40960 + i*1024}")
            a(f"s_add_u32 s36, s34, {(j*160 + TROW[i])*1280}")
            a(f"buffer_load_dwordx4 v11, s[28:31], s36 offen lds")
    for j in range(4):
        a(f"s_waitcnt vmcnt({30 - 10*j})")
        a("s_barrier")
    a("s_barrier")
    a("s_endpgm")
    a("K3_COMPUTE:")
    ACC = 0
    FW = [64, 80]
    FX = 96
    BW = 128
    LN = 140
    a(f"""
    v_mov_b32 v{LN}, v2
    s_mul_i32 s43, s5, {SEC}
    s_add_u32 s43, s43, {WS_O[0]}
    s_add_u32 s44, s20, s43
    s_addc_u32 s45, s21, 0
    """)
    srd(a, 24, 44, 45, SEC)
    a(f"""
    s_lshl_b32 s46, s8, 2
    s_add_u32 s46, s46, s11
    s_mul_i32 s47, s46, 40960
    v_lshlrev_b32 v141, 4, v2
    """)
    for s in range(8):
        a(f"s_add_u32 s48, s47, {s*1024}")
        a(f"buffer_load_dwordx4 {vr(FX+4*s,4)}, v141, s[24:27], s48 offen")
    a(f"""
    v_lshrrev_b32 v4, 5, v2
    v_and_b32 v5, 15, v2
    v_lshrrev_b32 v6, 2, v5
    v_lshlrev_b32 v7, 3, v4
    v_add_u32 v7, v7, v6
    v_lshlrev_b32 v7, 8, v7
    v_bfe_u32 v8, v2, 4, 1
    v_lshlrev_b32 v8, 5, v8
    v_add_u32 v7, v7, v8
    v_and_b32 v8, 3, v5
    v_lshlrev_b32 v8, 3, v8
    v_add_u32 v7, v7, v8
    """)
    for f in range(4):
        a(f"v_xor_b32 v8, {f}, v6")
        a(f"v_lshlrev_b32 v8, 6, v8")
        a(f"v_add_u32 v{BW+f}, v7, v8")
        a(f"v_add_u32 v{BW+4+f}, 65536, v{BW+f}")
        a(f"v_add_u32 v{BW+8+f}, 131072, v{BW+f}")
    for r in range(64):
        a(f"v_mov_b32 v{ACC+r}, 0")
    def reads(s):
        fs = s & 1
        R = []
        for f in range(4):
            for half in range(2):
                off = (16*s + 4*half) * 256
                bs, o = divmod(off, 65536)
                R.append(f"ds_read_b64_tr_b16 {vr(FW[fs]+4*f+2*half,2)}, v{BW+4*bs+f} offset:{o}")
        return R
    stamp(a, 2)
    a("s_barrier")
    stamp(a, 3)
    for r in reads(0): a(r)
    for s in range(40):
        fs = s & 1
        a("s_waitcnt lgkmcnt(0)")
        if s % 10 == 9 and s < 39:
            a("s_barrier")
        inflight = min(8, 40 - s)
        a(f"s_waitcnt vmcnt({inflight - 1})")
        R = reads(s + 1) if s + 1 < 40 else []
        x = vr(FX + 4*(s % 8), 4)
        for f in range(4):
            acc = vr(ACC + 16*f, 16)
            a(f"v_mfma_f32_32x32x16_bf16 {acc}, {vr(FW[fs]+4*f,4)}, {x}, {acc}")
            for r in R[2*f:2*f+2]: a(r)
        if s + 8 < 40:
            a(f"s_add_u32 s48, s47, {(s+8)*1024}")
            a(f"buffer_load_dwordx4 {x}, v141, s[24:27], s48 offen")
    a("s_nop 15")
    stamp(a, 4)
    a("s_barrier")
    a(f"""
    v_and_b32 v64, 31, v{LN}
    v_lshrrev_b32 v65, 5, v{LN}
    v_and_b32 v66, 15, v64
    v_lshlrev_b32 v67, 8, v64
    s_lshl_b32 s49, s11, 13
    v_add_u32 v67, s49, v67
    """)
    for f in range(4):
        for u in range(2):
            t = 72 + 4*((2*f+u) % 4)
            acc = ACC + 16*f + 8*u
            for j in range(4):
                a(f"v_cvt_pk_bf16_f32 v{t+j}, v{acc+2*j}, v{acc+2*j+1}")
            a(f"v_add_u32 v68, {4*f+2*u}, v65")
            a(f"v_xor_b32 v68, v68, v66")
            a(f"v_permlane32_swap_b32 v{t}, v{t+2}")
            a(f"v_permlane32_swap_b32 v{t+1}, v{t+3}")
            a(f"v_lshl_add_u32 v68, v68, 4, v67")
            a(f"ds_write_b128 v68, {vr(t,4)}")
    a("s_waitcnt lgkmcnt(0)")
    srd(a, 52, 16, 17, OUTB)
    a(f"""
    v_lshrrev_b32 v64, 4, v{LN}
    v_and_b32 v65, 15, v{LN}
    s_lshl_b32 s50, s46, 5
    s_mul_i32 s50, s50, 2560
    s_mul_i32 s51, s5, 1280
    s_add_u32 s50, s50, s51
    s_lshl_b32 s51, s9, 8
    s_add_u32 s50, s50, s51
    v_mul_u32_u24 v66, 2560, v64
    v_lshl_add_u32 v66, v65, 4, v66
    """)
    for i in range(8):
        a(f"v_add_u32 v68, {4*i}, v64")
        a(f"v_and_b32 v69, 15, v68")
        a(f"v_xor_b32 v69, v69, v65")
        a(f"v_lshlrev_b32 v68, 8, v68")
        a(f"v_lshl_add_u32 v68, v69, 4, v68")
        a(f"v_add_u32 v68, s49, v68")
        a(f"ds_read_b128 {vr(96+4*i,4)}, v68")
    for i in range(8):
        a(f"s_waitcnt lgkmcnt({7-i})")
        a(f"s_add_u32 s51, s50, {4*i*2560}")
        a(f"buffer_store_dwordx4 {vr(96+4*i,4)}, v66, s[52:55], s51 offen")
    if STAMP:
        a("s_waitcnt vmcnt(0)")
    stamp(a, 5); stamp_real(a, 6)
    stamp_flush(a, 2, 7, 11, 20, 0)
    a("K3_END:")
    a("s_endpgm")
    return a.text(), kd(NAME, 144, 100)
```

```python
from common import *

NAME = "k2_attn_kernel"
LN = 1
Q1, Q2 = 4, 8
AK1, AK2, AV = 10, 11, 12
T0, T1, T2 = 13, 14, 15
NEGM = 16
SS = [32, 48]
P = 64
QB1, QB2 = 72, 76
O = 80
KB1 = [96, 104]
KB2 = [100, 108]
VB = [112, 120]
LDS_K2 = 65536
LDS_V = 81920
NEGINF = 0xff800000

def mf16(a, d, x, y, c):
    a(f"v_mfma_f32_32x32x16_bf16 {vr(d,16)}, {vr(x,4)}, {vr(y,4)}, {c}")
def mf8(a, d, x, y, c):
    a(f"v_mfma_f32_32x32x8_bf16 {vr(d,16)}, {vr(x,2)}, {vr(y,2)}, {c}")

def half_bcast_max(a, v, t):
    a(f"v_mov_b32 v{t}, v{v}")
    a("s_nop 1")
    a(f"v_permlane32_swap_b32 v{v}, v{t}")
    a("s_nop 1")
    a(f"v_max_f32 v{v}, v{v}, v{t}")

def out_epilogue(a, srd_o, soff_main, soff_rem):
    a(f"""
    v_mov_b32 v{T0}, v{O+8}
    v_mov_b32 v{T1}, v{O+8}
    s_nop 1
    v_permlane32_swap_b32 v{T0}, v{T1}
    s_nop 1
    v_rcp_f32 v{T1}, v{T1}
    s_nop 1
    """)
    for r in range(12):
        a(f"v_mul_f32 v{O+r}, v{O+r}, v{T1}")
    for j in range(6):
        a(f"v_cvt_pk_bf16_f32 v{P+j}, v{O+2*j}, v{O+2*j+1}")
    a(f"""
    v_lshlrev_b32 v{T0}, 4, v{LN}
    buffer_store_dwordx4 {vr(P,4)}, v{T0}, s[{srd_o}:{srd_o+3}], s{soff_main} offen {STF}
    v_mov_b32 v{T2}, 0x40000000
    v_cmp_gt_u32 vcc, 32, v{LN}
    s_nop 1
    v_cndmask_b32 v{T2}, v{T2}, v{T0}, vcc
    buffer_store_dwordx2 {vr(P+4,2)}, v{T2}, s[{srd_o}:{srd_o+3}], s{soff_rem} offen {STF}
    """)

def tile(a, t, first_bar=False, last=False):
    c, n = t & 1, (t + 1) & 1
    Sc, Sn = SS[c], SS[n]
    E = lambda i: a(f"v_exp_f32 v{Sc+i}, v{Sc+i}")
    C = lambda j: a(f"v_cvt_pk_bf16_f32 v{P+j}, v{Sc+2*j}, v{Sc+2*j+1}")
    a("s_waitcnt lgkmcnt(0)")
    mf16(a, Sn, KB1[n], Q1, vr(NEGM, 16))
    E(0); E(1)
    mf16(a, O, VB[n] + 4, P + 4, vr(O, 16))
    a("s_mov_b64 exec, s[60:61]")
    a(f"ds_read_b128 {vr(VB[n],4)}, v{AV} offset:{(t+1)*1280}")
    a(f"ds_read_b128 {vr(VB[n]+4,4)}, v{AV} offset:{(t+1)*1280+640}")
    a("s_mov_b64 exec, -1")
    E(2); E(3); C(0); E(4); C(1)
    mf8(a, Sn, KB2[n], Q2, vr(Sn, 16))
    a(f"ds_read_b128 {vr(KB1[c],4)}, v{AK1} offset:{(t+2)*1024}")
    a(f"ds_read_b64 {vr(KB2[c],2)}, v{AK2} offset:{(t+2)*256}")
    E(5); E(6); E(7); C(2); E(8); C(3); E(9); E(10)
    mf16(a, O, VB[c], P, vr(O, 16))
    E(11); C(4); E(12); E(13); E(14); E(15); C(5); C(6); C(7)

def gen():
    a = Asm()
    a(entry(NAME))
    a(f"""
    s_cmp_ge_u32 s2, 256
    s_cbranch_scc1 K2_END
    s_load_dwordx2 s[20:21], s[0:1], 64
    """)
    stamp(a, 0); stamp_real(a, 1)
    a(f"""
    s_and_b32 s3, s2, 7
    s_lshr_b32 s4, s2, 3
    s_and_b32 s5, s4, 3
    s_lshl_b32 s3, s3, 2
    s_add_u32 s5, s5, s3
    s_lshr_b32 s6, s4, 2
    v_lshrrev_b32 v2, 6, v0
    v_and_b32 v{LN}, 63, v0
    s_mul_i32 s16, s5, 81920
    v_readfirstlane_b32 s7, v2
    s_lshr_b32 s9, s5, 1
    s_and_b32 s10, s5, 1
    s_mul_i32 s11, s9, 5
    s_mul_i32 s12, s10, 3
    s_add_u32 s12, s12, s11
    s_lshl_b32 s12, s12, 9
    s_add_u32 s13, s11, 2
    s_lshl_b32 s13, s13, 9
    s_lshl_b32 s14, s10, 3
    s_add_u32 s13, s13, s14
    s_lshl_b32 s8, s6, 3
    s_add_u32 s8, s8, s7
    s_mul_i32 s15, s8, 40960
    v_lshlrev_b32 v{AK1}, 4, v{LN}
    s_cmp_ge_u32 s7, 8
    s_cbranch_scc0 K2_COMPUTE
    """)
    def mk(d, off):
        a(f"s_add_u32 s22, s20, {off}")
        a(f"s_addc_u32 s23, s21, 0")
        srd(a, d, 22, 23, SEC)
    a(f"""
    s_sub_u32 s7, s7, 8
    v_lshrrev_b32 v2, 1, v{LN}
    v_lshlrev_b32 v2, 4, v2
    v_and_b32 v3, 1, v{LN}
    v_lshlrev_b32 v3, 2, v3
    v_add_u32 v2, v2, v3
    s_mul_i32 s65, s7, {2*40960}
    s_add_u32 s66, s65, s13
    s_add_u32 s65, s65, s12
    s_lshl_b32 s67, s7, 11
    s_lshl_b32 s69, s7, 9
    s_lshl_b32 s70, s7, 10
    s_add_u32 s68, s70, s16
    s_and_b32 s71, s7, 1
    s_lshl_b32 s71, s71, 10
    s_add_u32 s72, s71, s16
    s_waitcnt lgkmcnt(0)
    """)
    mk(28, WS_QK[0] + SEC); mk(32, WS_V[0])
    def grp(g):
        for i in range(2):
            a(f"s_add_u32 m0, s67, {g*8192 + i*1024}")
            a(f"s_add_u32 s62, s65, {(g*8+i)*40960}")
            a(f"buffer_load_dwordx4 v{AK1}, s[28:31], s62 offen lds")
            a(f"s_add_u32 m0, s69, {LDS_K2 + g*2048 + i*256}")
            a(f"s_add_u32 s62, s66, {(g*8+i)*40960}")
            a(f"buffer_load_dword v2, s[28:31], s62 offen lds")
        for i in range(2):
            a(f"s_add_u32 m0, s70, {LDS_V + g*10240 + i*4096}")
            a(f"s_add_u32 s62, s68, {g*10240 + i*4096}")
            a(f"buffer_load_dwordx4 v{AK1}, s[32:35], s62 offen lds")
        a(f"s_add_u32 m0, s71, {LDS_V + g*10240 + 8192}")
        a(f"s_add_u32 s62, s72, {g*10240 + 8192}")
        a(f"buffer_load_dwordx4 v{AK1}, s[32:35], s62 offen lds")
    grp(0); grp(1)
    a("s_waitcnt vmcnt(7)")
    a("s_barrier")
    for g in range(2, 8): grp(g)
    a("s_waitcnt vmcnt(35)")
    a("s_barrier")
    a("s_waitcnt vmcnt(0)")
    a("s_barrier")
    a("s_endpgm")
    a("K2_COMPUTE:")
    a(f"""
    v_and_b32 v2, 31, v{LN}
    v_lshrrev_b32 v3, 5, v{LN}
    v_lshlrev_b32 v{T0}, 4, v2
    v_mov_b32 v{T1}, 0x40000000
    v_cmp_gt_u32 vcc, 32, v{LN}
    s_add_u32 s62, s15, s12
    s_add_u32 s63, s15, s13
    v_cndmask_b32 v{T1}, v{T1}, v{T0}, vcc
    s_waitcnt lgkmcnt(0)
    """)
    mk(24, WS_QK[0])
    a(f"""
    buffer_load_dwordx4 {vr(Q1,4)}, v{AK1}, s[24:27], s62 offen
    buffer_load_dwordx2 {vr(Q2,2)}, v{T1}, s[24:27], s63 offen
    v_cmp_gt_u32 s[60:61], 20, v2
    v_cmp_eq_u32 vcc, 20, v2
    v_mov_b32 v{T2}, 0x3f803f80
    v_lshlrev_b32 v{AK2}, 3, v2
    v_cndmask_b32 v{T2}, 0, v{T2}, vcc
    v_add_u32 v{AK2}, {LDS_K2}, v{AK2}
    """)
    for r in range(16):
        a(f"v_mov_b32 v{VB[0]+r}, v{T2}")
    mk(36, WS_O[0])
    a(f"""
    s_lshl_b32 s56, s10, 1
    s_add_u32 s56, s56, s11
    s_lshl_b32 s56, s56, 9
    s_add_u32 s57, s11, 4
    s_lshl_b32 s57, s57, 9
    s_add_u32 s57, s57, s14
    s_add_u32 s70, s56, s15
    s_add_u32 s71, s57, s15
    s_mov_b32 s72, 5
    s_mov_b32 s73, 0
    """)
    if PRIO:
        a("s_setprio 1\ns_cmp_lt_u32 s7, 4\ns_cbranch_scc0 K2_NOPRIO\ns_setprio 2\nK2_NOPRIO:")
    a("s_waitcnt vmcnt(0)")
    stamp(a, 2)
    a("s_barrier")
    stamp(a, 3)
    a(f"""
    ds_read_b128 {vr(KB1[0],4)}, v{AK1}
    ds_read_b64 {vr(KB2[0],2)}, v{AK2}
    s_waitcnt lgkmcnt(0)
    """)
    mf16(a, SS[0], KB1[0], Q1, "0")
    mf8(a, SS[0], KB2[0], Q2, vr(SS[0], 16))
    a("s_nop 15")
    a(f"v_max3_f32 v{T0}, v{SS[0]}, v{SS[0]+1}, v{SS[0]+2}")
    for i in range(3, 15, 2):
        a(f"v_max3_f32 v{T0}, v{T0}, v{SS[0]+i}, v{SS[0]+i+1}")
    a(f"v_max_f32 v{T0}, v{T0}, v{SS[0]+15}")
    half_bcast_max(a, T0, T1)
    a("K2_RESTART:")
    for r in range(16):
        a(f"v_sub_f32 v{NEGM+r}, 0, v{T0}")
    for r in range(16):
        a(f"v_mov_b32 v{O+r}, 0")
    for r in range(4):
        a(f"v_mov_b32 v{P+4+r}, 0")
    a(f"""
    v_lshlrev_b32 v{AK1}, 4, v{LN}
    v_and_b32 v2, 31, v{LN}
    v_lshlrev_b32 v{AK2}, 3, v2
    v_add_u32 v{AK2}, {LDS_K2}, v{AK2}
    v_lshrrev_b32 v3, 5, v{LN}
    v_mul_u32_u24 v{AV}, 320, v3
    v_lshlrev_b32 v2, 4, v2
    v_add_u32 v{AV}, v{AV}, v2
    v_add_u32 v{AV}, {LDS_V}, v{AV}
    ds_read_b128 {vr(KB1[0],4)}, v{AK1}
    ds_read_b64 {vr(KB2[0],2)}, v{AK2}
    ds_read_b128 {vr(KB1[1],4)}, v{AK1} offset:1024
    ds_read_b64 {vr(KB2[1],2)}, v{AK2} offset:256
    s_mov_b64 exec, s[60:61]
    ds_read_b128 {vr(VB[0],4)}, v{AV}
    ds_read_b128 {vr(VB[0]+4,4)}, v{AV} offset:640
    ds_read_b128 {vr(VB[1]+4,4)}, v{AV} offset:640
    s_mov_b64 exec, -1
    s_waitcnt lgkmcnt(0)
    """)
    mf16(a, SS[0], KB1[0], Q1, vr(NEGM, 16))
    mf8(a, SS[0], KB2[0], Q2, vr(SS[0], 16))
    a("s_nop 15")
    a("s_mov_b32 s74, 0")
    stamp(a, 4)
    a("K2_LOOP:")
    for t in range(8):
        if t == 6:
            a("""
            s_bitcmp1_b32 s72, 0
            s_cbranch_scc0 K2_NOBAR
            s_barrier
            K2_NOBAR:
            s_lshr_b32 s72, s72, 1
            """)
        tile(a, t)
    a(f"""
    v_add_u32 v{AK1}, 8192, v{AK1}
    v_add_u32 v{AK2}, 2048, v{AK2}
    v_add_u32 v{AV}, 10240, v{AV}
    s_add_u32 s74, s74, 1
    """)
    if 0 < PRIO < 8:
        a(f"""
        s_cmp_eq_u32 s74, {PRIO}
        s_cselect_b32 s62, s7, 4
        s_cmp_lt_u32 s62, 4
        s_cbranch_scc0 K2_KEEPPRIO
        s_setprio 0
        K2_KEEPPRIO:
        """)
    a(f"""
    s_cmp_lt_u32 s74, 8
    s_cbranch_scc1 K2_LOOP
    s_nop 1
    """)
    mf16(a, O, VB[1] + 4, P + 4, vr(O, 16))
    a("s_waitcnt lgkmcnt(0)")
    a("s_nop 15")
    a(f"v_mov_b32 v{T1}, 0")
    for r in range(12):
        a(f"v_fma_f32 v{T1}, v{O+r}, 0, v{T1}")
    a(f"""
    v_mov_b32 v{T2}, 0x5f800000
    v_cmp_gt_u32 vcc, 32, v{LN}
    s_nop 1
    v_cndmask_b32 v{T0}, v{O+8}, 0, vcc
    v_add_f32 v{T0}, v{T0}, v{T1}
    v_cmp_nle_f32 vcc, v{T0}, v{T2}
    s_nop 4
    s_cbranch_vccz K2_FIN
    s_cmp_eq_u32 s73, 0
    s_cbranch_scc0 K2_FIN
    s_mov_b32 s73, 1
    """)
    a(f"""
    v_lshlrev_b32 v{AK1}, 4, v{LN}
    v_and_b32 v2, 31, v{LN}
    v_lshlrev_b32 v{AK2}, 3, v2
    v_add_u32 v{AK2}, {LDS_K2}, v{AK2}
    v_mov_b32 v{T0}, 0x{NEGINF:x}
    s_mov_b32 s74, 0
    K2_MAXLOOP:
    ds_read_b128 {vr(KB1[0],4)}, v{AK1}
    ds_read_b64 {vr(KB2[0],2)}, v{AK2}
    s_waitcnt lgkmcnt(0)
    """)
    mf16(a, SS[0], KB1[0], Q1, "0")
    mf8(a, SS[0], KB2[0], Q2, vr(SS[0], 16))
    a("s_nop 15")
    for i in range(0, 16, 2):
        a(f"v_max3_f32 v{T0}, v{T0}, v{SS[0]+i}, v{SS[0]+i+1}")
    a(f"""
    v_add_u32 v{AK1}, 1024, v{AK1}
    v_add_u32 v{AK2}, 256, v{AK2}
    s_add_u32 s74, s74, 1
    s_cmp_lt_u32 s74, 64
    s_cbranch_scc1 K2_MAXLOOP
    """)
    half_bcast_max(a, T0, T1)
    a("s_branch K2_RESTART")
    a("K2_FIN:")
    stamp(a, 5)
    out_epilogue(a, 36, 70, 71)
    stamp(a, 6)
    a("s_cmp_lt_u32 s7, 4")
    a("s_cbranch_scc0 K2_DONE")
    mk(40, WS_QK[1]); mk(44, WS_QK[1] + SEC); mk(48, WS_V[1]); mk(52, WS_O[1])
    a("s_mov_b32 s74, 0")
    a("K2_BLOOP:")
    a(f"""
    v_and_b32 v2, 31, v{LN}
    v_lshrrev_b32 v3, 5, v{LN}
    v_lshlrev_b32 v{AK1}, 4, v{LN}
    v_lshlrev_b32 v{T0}, 4, v2
    v_mov_b32 v{T1}, 0x40000000
    v_cmp_gt_u32 vcc, 32, v{LN}
    v_mul_u32_u24 v{AV}, 320, v3
    v_add_u32 v{AV}, v{AV}, v{T0}
    v_cndmask_b32 v{T1}, v{T1}, v{T0}, vcc
    s_cmp_eq_u32 s8, 0
    s_cselect_b32 s17, 0, 1
    s_sub_u32 s18, s8, s17
    s_mul_i32 s19, s18, 40960
    s_add_u32 s62, s15, s12
    buffer_load_dwordx4 {vr(QB1,4)}, v{AK1}, s[40:43], s62 offen
    buffer_load_dwordx4 {vr(KB1[0],4)}, v{AK1}, s[44:47], s62 offen
    s_add_u32 s62, s15, s13
    buffer_load_dwordx2 {vr(QB2,2)}, v{T1}, s[40:43], s62 offen
    buffer_load_dwordx2 {vr(KB2[0],2)}, v{T0}, s[44:47], s62 offen
    s_add_u32 s62, s19, s12
    buffer_load_dwordx4 {vr(KB1[1],4)}, v{AK1}, s[44:47], s62 offen
    s_add_u32 s62, s19, s13
    buffer_load_dwordx2 {vr(KB2[1],2)}, v{T0}, s[44:47], s62 offen
    s_mul_i32 s63, s8, 1280
    s_add_u32 s63, s63, s16
    s_mul_i32 s64, s18, 1280
    s_add_u32 s64, s64, s16
    s_mov_b64 exec, s[60:61]
    buffer_load_dwordx4 {vr(VB[0],4)}, v{AV}, s[48:51], s63 offen
    buffer_load_dwordx4 {vr(VB[0]+4,4)}, v{AV}, s[48:51], s63 offen offset:640
    buffer_load_dwordx4 {vr(VB[1],4)}, v{AV}, s[48:51], s64 offen offset:640
    s_mov_b64 exec, -1
    """)
    a(f"""
    v_add_u32 v3, 18, v2
    v_mov_b32 v16, 0x5555
    v_mov_b32 v17, 0
    v_lshlrev_b64 v[16:17], v3, v[16:17]
    v_lshrrev_b32 v3, 5, v{LN}
    v_lshlrev_b32 v3, 2, v3
    v_lshrrev_b64 v[16:17], v3, v[16:17]
    s_sub_u32 s62, 0, s17
    v_and_b32 v16, s62, v16
    v_not_b32 v16, v16
    v_not_b32 v17, v17
    """)
    for g in range(4):
        for r in range(4):
            a(f"v_bfe_i32 v{SS[0]+4*g+r}, v17, {8*g+r}, 1")
            a(f"v_lshlrev_b32 v{SS[0]+4*g+r}, 23, v{SS[0]+4*g+r}")
    for g in range(4):
        for r in range(4):
            if g < 2:
                a(f"v_mov_b32 v{SS[1]+4*g+r}, 0x{NEGINF:x}")
            else:
                a(f"v_bfe_i32 v{SS[1]+4*g+r}, v16, {8*g+r}, 1")
                a(f"v_lshlrev_b32 v{SS[1]+4*g+r}, 23, v{SS[1]+4*g+r}")
    a("s_waitcnt vmcnt(0)")
    mf16(a, SS[0], KB1[0], QB1, vr(SS[0], 16))
    mf16(a, SS[1], KB1[1], QB1, vr(SS[1], 16))
    mf8(a, SS[0], KB2[0], QB2, vr(SS[0], 16))
    mf8(a, SS[1], KB2[1], QB2, vr(SS[1], 16))
    a("s_nop 15")
    regs = [SS[0] + i for i in range(16)] + [SS[1] + 8 + i for i in range(8)]
    a(f"v_max3_f32 v{T0}, v{regs[0]}, v{regs[1]}, v{regs[2]}")
    for i in range(3, 23, 2):
        a(f"v_max3_f32 v{T0}, v{T0}, v{regs[i]}, v{regs[i+1]}")
    a(f"v_max_f32 v{T0}, v{T0}, v{regs[23]}")
    half_bcast_max(a, T0, T1)
    for r in regs:
        a(f"v_sub_f32 v{r}, v{r}, v{T0}")
    for r in regs:
        a(f"v_exp_f32 v{r}, v{r}")
    a("s_nop 0")
    for j in range(8):
        a(f"v_cvt_pk_bf16_f32 v{P+j}, v{SS[0]+2*j}, v{SS[0]+2*j+1}")
    for j in range(4):
        a(f"v_cvt_pk_bf16_f32 v{QB1+j}, v{SS[1]+8+2*j}, v{SS[1]+8+2*j+1}")
    a("s_nop 1")
    mf16(a, O, VB[0], P, "0")
    mf16(a, O, VB[0] + 4, P + 4, vr(O, 16))
    mf16(a, O, VB[1], QB1, vr(O, 16))
    a(f"""
    s_add_u32 s70, s56, s15
    s_add_u32 s71, s57, s15
    s_nop 15
    """)
    out_epilogue(a, 52, 70, 71)
    a(f"""
    s_add_u32 s8, s8, 4
    s_add_u32 s15, s15, {4*40960}
    s_add_u32 s74, s74, 1
    s_cmp_lt_u32 s74, 2
    s_cbranch_scc1 K2_BLOOP
    """)
    a("K2_DONE:")
    if STAMP:
        a("s_waitcnt vmcnt(0)")
    stamp(a, 7); stamp_real(a, 8)
    stamp_flush(a, 1, 9, 7, 20, 0)
    stamp_flush(a, 1, 9, 7, 20, 7, slot=1)
    a("K2_END:")
    a("s_endpgm")
    return a.text(), kd(NAME, 128, 100)
```

```python
from common import *

NAME = "k2_attn_kernel"
LN = 1
Q1, Q2 = 4, 8
AK1, AK2, AV = 10, 11, 12
T0, T1, T2 = 13, 14, 15
NEGM = 16
SS = [32, 48]
P = 64
QB1, QB2 = 72, 76
O = 80
KB1 = [96, 104]
KB2 = [100, 108]
VB = [112, 120]
LDS_K2 = 65536
LDS_V = 81920
NEGINF = 0xff800000

def mf16(a, d, x, y, c):
    a(f"v_mfma_f32_32x32x16_bf16 {vr(d,16)}, {vr(x,4)}, {vr(y,4)}, {c}")
def mf8(a, d, x, y, c):
    a(f"v_mfma_f32_32x32x8_bf16 {vr(d,16)}, {vr(x,2)}, {vr(y,2)}, {c}")

def half_bcast_max(a, v, t):
    a(f"v_mov_b32 v{t}, v{v}")
    a("s_nop 1")
    a(f"v_permlane32_swap_b32 v{v}, v{t}")
    a("s_nop 1")
    a(f"v_max_f32 v{v}, v{v}, v{t}")

def out_epilogue(a, srd_o, soff_main, soff_rem):
    a(f"""
    v_mov_b32 v{T0}, v{O+8}
    v_mov_b32 v{T1}, v{O+8}
    s_nop 1
    v_permlane32_swap_b32 v{T0}, v{T1}
    s_nop 1
    v_rcp_f32 v{T1}, v{T1}
    s_nop 1
    """)
    for r in range(12):
        a(f"v_mul_f32 v{O+r}, v{O+r}, v{T1}")
    for j in range(6):
        a(f"v_cvt_pk_bf16_f32 v{P+j}, v{O+2*j}, v{O+2*j+1}")
    a(f"""
    v_lshlrev_b32 v{T0}, 4, v{LN}
    buffer_store_dwordx4 {vr(P,4)}, v{T0}, s[{srd_o}:{srd_o+3}], s{soff_main} offen {STF}
    v_mov_b32 v{T2}, 0x40000000
    v_cmp_gt_u32 vcc, 32, v{LN}
    s_nop 1
    v_cndmask_b32 v{T2}, v{T2}, v{T0}, vcc
    buffer_store_dwordx2 {vr(P+4,2)}, v{T2}, s[{srd_o}:{srd_o+3}], s{soff_rem} offen {STF}
    """)

def tile(a, t, first_bar=False, last=False):
    c, n = t & 1, (t + 1) & 1
    Sc, Sn = SS[c], SS[n]
    E = lambda i: a(f"v_exp_f32 v{Sc+i}, v{Sc+i}")
    C = lambda j: a(f"v_cvt_pk_bf16_f32 v{P+j}, v{Sc+2*j}, v{Sc+2*j+1}")
    a("s_waitcnt lgkmcnt(0)")
    mf16(a, Sn, KB1[n], Q1, vr(NEGM, 16))
    E(0); E(1)
    mf16(a, O, VB[n] + 4, P + 4, vr(O, 16))
    a("s_mov_b64 exec, s[60:61]")
    a(f"ds_read_b128 {vr(VB[n],4)}, v{AV} offset:{(t+1)*1280}")
    a(f"ds_read_b128 {vr(VB[n]+4,4)}, v{AV} offset:{(t+1)*1280+640}")
    a("s_mov_b64 exec, -1")
    E(2); E(3); C(0); E(4); C(1)
    mf8(a, Sn, KB2[n], Q2, vr(Sn, 16))
    a(f"ds_read_b128 {vr(KB1[c],4)}, v{AK1} offset:{(t+2)*1024}")
    a(f"ds_read_b64 {vr(KB2[c],2)}, v{AK2} offset:{(t+2)*256}")
    E(5); E(6); E(7); C(2); E(8); C(3); E(9); E(10)
    mf16(a, O, VB[c], P, vr(O, 16))
    E(11); C(4); E(12); E(13); E(14); E(15); C(5); C(6); C(7)

def gen():
    a = Asm()
    a(entry(NAME))
    a(f"""
    s_cmp_ge_u32 s2, 256
    s_cbranch_scc1 K2_END
    s_load_dwordx2 s[20:21], s[0:1], 64
    """)
    stamp(a, 0); stamp_real(a, 1)
    a(f"""
    s_and_b32 s3, s2, 7
    s_lshr_b32 s4, s2, 3
    s_and_b32 s5, s4, 3
    s_lshl_b32 s3, s3, 2
    s_add_u32 s5, s5, s3
    s_lshr_b32 s6, s4, 2
    v_lshrrev_b32 v2, 6, v0
    v_and_b32 v{LN}, 63, v0
    s_mul_i32 s16, s5, 81920
    v_readfirstlane_b32 s7, v2
    s_lshr_b32 s9, s5, 1
    s_and_b32 s10, s5, 1
    s_mul_i32 s11, s9, 5
    s_mul_i32 s12, s10, 3
    s_add_u32 s12, s12, s11
    s_lshl_b32 s12, s12, 9
    s_add_u32 s13, s11, 2
    s_lshl_b32 s13, s13, 9
    s_lshl_b32 s14, s10, 3
    s_add_u32 s13, s13, s14
    s_lshl_b32 s8, s6, 3
    s_add_u32 s8, s8, s7
    s_mul_i32 s15, s8, 40960
    v_lshlrev_b32 v{AK1}, 4, v{LN}
    s_cmp_ge_u32 s7, 8
    s_cbranch_scc0 K2_COMPUTE
    """)
    def mk(d, off):
        a(f"s_add_u32 s22, s20, {off}")
        a(f"s_addc_u32 s23, s21, 0")
        srd(a, d, 22, 23, SEC)
    a(f"""
    s_sub_u32 s7, s7, 8
    v_lshrrev_b32 v2, 1, v{LN}
    v_lshlrev_b32 v2, 4, v2
    v_and_b32 v3, 1, v{LN}
    v_lshlrev_b32 v3, 2, v3
    v_add_u32 v2, v2, v3
    s_mul_i32 s65, s7, {2*40960}
    s_add_u32 s66, s65, s13
    s_add_u32 s65, s65, s12
    s_lshl_b32 s67, s7, 11
    s_lshl_b32 s69, s7, 9
    s_lshl_b32 s70, s7, 10
    s_add_u32 s68, s70, s16
    s_and_b32 s71, s7, 1
    s_lshl_b32 s71, s71, 10
    s_add_u32 s72, s71, s16
    s_waitcnt lgkmcnt(0)
    """)
    mk(28, WS_QK[0] + SEC); mk(32, WS_V[0])
    def grp(g):
        for i in range(2):
            a(f"s_add_u32 m0, s67, {g*8192 + i*1024}")
            a(f"s_add_u32 s62, s65, {(g*8+i)*40960}")
            a(f"buffer_load_dwordx4 v{AK1}, s[28:31], s62 offen lds")
            a(f"s_add_u32 m0, s69, {LDS_K2 + g*2048 + i*256}")
            a(f"s_add_u32 s62, s66, {(g*8+i)*40960}")
            a(f"buffer_load_dword v2, s[28:31], s62 offen lds")
        for i in range(2):
            a(f"s_add_u32 m0, s70, {LDS_V + g*10240 + i*4096}")
            a(f"s_add_u32 s62, s68, {g*10240 + i*4096}")
            a(f"buffer_load_dwordx4 v{AK1}, s[32:35], s62 offen lds")
        a(f"s_add_u32 m0, s71, {LDS_V + g*10240 + 8192}")
        a(f"s_add_u32 s62, s72, {g*10240 + 8192}")
        a(f"buffer_load_dwordx4 v{AK1}, s[32:35], s62 offen lds")
    grp(0); grp(1)
    a("s_waitcnt vmcnt(7)")
    a("s_barrier")
    for g in range(2, 8): grp(g)
    a("s_waitcnt vmcnt(35)")
    a("s_barrier")
    a("s_waitcnt vmcnt(0)")
    a("s_barrier")
    a(f"""
    s_lshl_b32 s40, s2, 2
    s_add_u32 s40, s40, s7
    s_load_dwordx2 s[44:45], s[0:1], 16
    s_load_dwordx2 s[46:47], s[0:1], 40
    s_add_u32 s22, s20, {WS_WP}
    s_addc_u32 s23, s21, 0
    """)
    srd(a, 36, 22, 23, 1600 * 1024)
    a(f"""
    v_lshrrev_b32 v4, 4, v{LN}
    v_and_b32 v5, 15, v{LN}
    s_waitcnt lgkmcnt(0)
    K2_WPLOOP:
    s_mul_i32 s41, s40, 5243
    s_lshr_b32 s41, s41, 19
    s_mul_i32 s42, s41, 100
    s_sub_u32 s42, s40, s42
    s_mul_i32 s43, s42, 205
    s_lshr_b32 s43, s43, 10
    s_mul_i32 s48, s43, 5
    s_sub_u32 s48, s42, s48
    s_cmp_ge_u32 s41, 8
    s_cselect_b32 s52, s46, s44
    s_cselect_b32 s53, s47, s45
    s_and_b32 s41, s41, 7
    s_mul_i32 s41, s41, 160
    s_lshl_b32 s48, s48, 5
    s_add_u32 s41, s41, s48
    s_lshl_b32 s43, s43, 2
    """)
    srd(a, 56, 52, 53, WOB)
    a(f"""
    v_add_u32 v6, s43, v4
    v_mul_u32_u24 v7, 205, v6
    v_lshrrev_b32 v7, 10, v7
    v_mul_u32_u24 v8, 5, v7
    v_sub_u32 v8, v6, v8
    v_mul_u32_u24 v7, 40, v7
    v_lshrrev_b32 v9, 1, v8
    v_mul_u32_u24 v9, 20, v9
    v_and_b32 v11, 1, v8
    v_lshl_add_u32 v9, v11, 2, v9
    v_cmp_eq_u32 vcc, 4, v8
    v_mov_b32 v11, 8
    v_cndmask_b32 v9, v9, 16, vcc
    v_cndmask_b32 v11, v11, 20, vcc
    v_add_u32 v7, v7, v9
    v_add_u32 v11, v7, v11
    v_mul_u32_u24 v7, 1280, v7
    v_mul_u32_u24 v11, 1280, v11
    v_lshl_add_u32 v7, v5, 1, v7
    v_lshl_add_u32 v11, v5, 1, v11
    """)
    for e in range(8):
        a(f"buffer_load_ushort v{16+e}, v{7 if e < 4 else 11}, s[56:59], s41 offen offset:{(e&3)*1280}")
    a("s_lshl_b32 s48, s40, 10")
    a("s_waitcnt vmcnt(0)")
    for j in range(4):
        a(f"v_lshl_or_b32 v{24+j}, v{17+2*j}, 16, v{16+2*j}")
    a(f"""
    buffer_store_dwordx4 v[24:27], v{AK1}, s[36:39], s48 offen
    s_add_u32 s40, s40, 1024
    s_cmp_lt_u32 s40, 1600
    s_cbranch_scc1 K2_WPLOOP
    """)
    a("s_endpgm")
    a("K2_COMPUTE:")
    a(f"""
    v_and_b32 v2, 31, v{LN}
    v_lshrrev_b32 v3, 5, v{LN}
    v_lshlrev_b32 v{T0}, 4, v2
    v_mov_b32 v{T1}, 0x40000000
    v_cmp_gt_u32 vcc, 32, v{LN}
    s_add_u32 s62, s15, s12
    s_add_u32 s63, s15, s13
    v_cndmask_b32 v{T1}, v{T1}, v{T0}, vcc
    s_waitcnt lgkmcnt(0)
    """)
    mk(24, WS_QK[0])
    a(f"""
    buffer_load_dwordx4 {vr(Q1,4)}, v{AK1}, s[24:27], s62 offen
    buffer_load_dwordx2 {vr(Q2,2)}, v{T1}, s[24:27], s63 offen
    v_cmp_gt_u32 s[60:61], 20, v2
    v_cmp_eq_u32 vcc, 20, v2
    v_mov_b32 v{T2}, 0x3f803f80
    v_lshlrev_b32 v{AK2}, 3, v2
    v_cndmask_b32 v{T2}, 0, v{T2}, vcc
    v_add_u32 v{AK2}, {LDS_K2}, v{AK2}
    """)
    for r in range(16):
        a(f"v_mov_b32 v{VB[0]+r}, v{T2}")
    mk(36, WS_O[0])
    a(f"""
    s_lshl_b32 s56, s10, 1
    s_add_u32 s56, s56, s11
    s_lshl_b32 s56, s56, 9
    s_add_u32 s57, s11, 4
    s_lshl_b32 s57, s57, 9
    s_add_u32 s57, s57, s14
    s_add_u32 s70, s56, s15
    s_add_u32 s71, s57, s15
    s_mov_b32 s72, 5
    s_mov_b32 s73, 0
    """)
    if PRIO:
        a("s_setprio 1\ns_cmp_lt_u32 s7, 4\ns_cbranch_scc0 K2_NOPRIO\ns_setprio 2\nK2_NOPRIO:")
    a("s_waitcnt vmcnt(0)")
    stamp(a, 2)
    a("s_barrier")
    stamp(a, 3)
    a(f"""
    ds_read_b128 {vr(KB1[0],4)}, v{AK1}
    ds_read_b64 {vr(KB2[0],2)}, v{AK2}
    s_waitcnt lgkmcnt(0)
    """)
    mf16(a, SS[0], KB1[0], Q1, "0")
    mf8(a, SS[0], KB2[0], Q2, vr(SS[0], 16))
    a("s_nop 15")
    a(f"v_max3_f32 v{T0}, v{SS[0]}, v{SS[0]+1}, v{SS[0]+2}")
    for i in range(3, 15, 2):
        a(f"v_max3_f32 v{T0}, v{T0}, v{SS[0]+i}, v{SS[0]+i+1}")
    a(f"v_max_f32 v{T0}, v{T0}, v{SS[0]+15}")
    half_bcast_max(a, T0, T1)
    a("K2_RESTART:")
    for r in range(16):
        a(f"v_sub_f32 v{NEGM+r}, 0, v{T0}")
    for r in range(16):
        a(f"v_mov_b32 v{O+r}, 0")
    for r in range(4):
        a(f"v_mov_b32 v{P+4+r}, 0")
    a(f"""
    v_lshlrev_b32 v{AK1}, 4, v{LN}
    v_and_b32 v2, 31, v{LN}
    v_lshlrev_b32 v{AK2}, 3, v2
    v_add_u32 v{AK2}, {LDS_K2}, v{AK2}
    v_lshrrev_b32 v3, 5, v{LN}
    v_mul_u32_u24 v{AV}, 320, v3
    v_lshlrev_b32 v2, 4, v2
    v_add_u32 v{AV}, v{AV}, v2
    v_add_u32 v{AV}, {LDS_V}, v{AV}
    ds_read_b128 {vr(KB1[0],4)}, v{AK1}
    ds_read_b64 {vr(KB2[0],2)}, v{AK2}
    ds_read_b128 {vr(KB1[1],4)}, v{AK1} offset:1024
    ds_read_b64 {vr(KB2[1],2)}, v{AK2} offset:256
    s_mov_b64 exec, s[60:61]
    ds_read_b128 {vr(VB[0],4)}, v{AV}
    ds_read_b128 {vr(VB[0]+4,4)}, v{AV} offset:640
    ds_read_b128 {vr(VB[1]+4,4)}, v{AV} offset:640
    s_mov_b64 exec, -1
    s_waitcnt lgkmcnt(0)
    """)
    mf16(a, SS[0], KB1[0], Q1, vr(NEGM, 16))
    mf8(a, SS[0], KB2[0], Q2, vr(SS[0], 16))
    a("s_nop 15")
    a("s_mov_b32 s74, 0")
    stamp(a, 4)
    a("K2_LOOP:")
    for t in range(8):
        if t == 6:
            a("""
            s_bitcmp1_b32 s72, 0
            s_cbranch_scc0 K2_NOBAR
            s_barrier
            K2_NOBAR:
            s_lshr_b32 s72, s72, 1
            """)
        tile(a, t)
    a(f"""
    v_add_u32 v{AK1}, 8192, v{AK1}
    v_add_u32 v{AK2}, 2048, v{AK2}
    v_add_u32 v{AV}, 10240, v{AV}
    s_add_u32 s74, s74, 1
    """)
    if 0 < PRIO < 8:
        a(f"""
        s_cmp_eq_u32 s74, {PRIO}
        s_cselect_b32 s62, s7, 4
        s_cmp_lt_u32 s62, 4
        s_cbranch_scc0 K2_KEEPPRIO
        s_setprio 0
        K2_KEEPPRIO:
        """)
    a(f"""
    s_cmp_lt_u32 s74, 8
    s_cbranch_scc1 K2_LOOP
    s_nop 1
    """)
    mf16(a, O, VB[1] + 4, P + 4, vr(O, 16))
    a("s_waitcnt lgkmcnt(0)")
    a("s_nop 15")
    a(f"v_mov_b32 v{T1}, 0")
    for r in range(12):
        a(f"v_fma_f32 v{T1}, v{O+r}, 0, v{T1}")
    a(f"""
    v_mov_b32 v{T2}, 0x5f800000
    v_cmp_gt_u32 vcc, 32, v{LN}
    s_nop 1
    v_cndmask_b32 v{T0}, v{O+8}, 0, vcc
    v_add_f32 v{T0}, v{T0}, v{T1}
    v_cmp_nle_f32 vcc, v{T0}, v{T2}
    s_nop 4
    s_cbranch_vccz K2_FIN
    s_cmp_eq_u32 s73, 0
    s_cbranch_scc0 K2_FIN
    s_mov_b32 s73, 1
    """)
    a(f"""
    v_lshlrev_b32 v{AK1}, 4, v{LN}
    v_and_b32 v2, 31, v{LN}
    v_lshlrev_b32 v{AK2}, 3, v2
    v_add_u32 v{AK2}, {LDS_K2}, v{AK2}
    v_mov_b32 v{T0}, 0x{NEGINF:x}
    s_mov_b32 s74, 0
    K2_MAXLOOP:
    ds_read_b128 {vr(KB1[0],4)}, v{AK1}
    ds_read_b64 {vr(KB2[0],2)}, v{AK2}
    s_waitcnt lgkmcnt(0)
    """)
    mf16(a, SS[0], KB1[0], Q1, "0")
    mf8(a, SS[0], KB2[0], Q2, vr(SS[0], 16))
    a("s_nop 15")
    for i in range(0, 16, 2):
        a(f"v_max3_f32 v{T0}, v{T0}, v{SS[0]+i}, v{SS[0]+i+1}")
    a(f"""
    v_add_u32 v{AK1}, 1024, v{AK1}
    v_add_u32 v{AK2}, 256, v{AK2}
    s_add_u32 s74, s74, 1
    s_cmp_lt_u32 s74, 64
    s_cbranch_scc1 K2_MAXLOOP
    """)
    half_bcast_max(a, T0, T1)
    a("s_branch K2_RESTART")
    a("K2_FIN:")
    stamp(a, 5)
    out_epilogue(a, 36, 70, 71)
    stamp(a, 6)
    a("s_cmp_lt_u32 s7, 4")
    a("s_cbranch_scc0 K2_DONE")
    mk(40, WS_QK[1]); mk(44, WS_QK[1] + SEC); mk(48, WS_V[1]); mk(52, WS_O[1])
    a("s_mov_b32 s74, 0")
    a("K2_BLOOP:")
    a(f"""
    v_and_b32 v2, 31, v{LN}
    v_lshrrev_b32 v3, 5, v{LN}
    v_lshlrev_b32 v{AK1}, 4, v{LN}
    v_lshlrev_b32 v{T0}, 4, v2
    v_mov_b32 v{T1}, 0x40000000
    v_cmp_gt_u32 vcc, 32, v{LN}
    v_mul_u32_u24 v{AV}, 320, v3
    v_add_u32 v{AV}, v{AV}, v{T0}
    v_cndmask_b32 v{T1}, v{T1}, v{T0}, vcc
    s_cmp_eq_u32 s8, 0
    s_cselect_b32 s17, 0, 1
    s_sub_u32 s18, s8, s17
    s_mul_i32 s19, s18, 40960
    s_add_u32 s62, s15, s12
    buffer_load_dwordx4 {vr(QB1,4)}, v{AK1}, s[40:43], s62 offen
    buffer_load_dwordx4 {vr(KB1[0],4)}, v{AK1}, s[44:47], s62 offen
    s_add_u32 s62, s15, s13
    buffer_load_dwordx2 {vr(QB2,2)}, v{T1}, s[40:43], s62 offen
    buffer_load_dwordx2 {vr(KB2[0],2)}, v{T0}, s[44:47], s62 offen
    s_add_u32 s62, s19, s12
    buffer_load_dwordx4 {vr(KB1[1],4)}, v{AK1}, s[44:47], s62 offen
    s_add_u32 s62, s19, s13
    buffer_load_dwordx2 {vr(KB2[1],2)}, v{T0}, s[44:47], s62 offen
    s_mul_i32 s63, s8, 1280
    s_add_u32 s63, s63, s16
    s_mul_i32 s64, s18, 1280
    s_add_u32 s64, s64, s16
    s_mov_b64 exec, s[60:61]
    buffer_load_dwordx4 {vr(VB[0],4)}, v{AV}, s[48:51], s63 offen
    buffer_load_dwordx4 {vr(VB[0]+4,4)}, v{AV}, s[48:51], s63 offen offset:640
    buffer_load_dwordx4 {vr(VB[1],4)}, v{AV}, s[48:51], s64 offen offset:640
    s_mov_b64 exec, -1
    """)
    a(f"""
    v_add_u32 v3, 18, v2
    v_mov_b32 v16, 0x5555
    v_mov_b32 v17, 0
    v_lshlrev_b64 v[16:17], v3, v[16:17]
    v_lshrrev_b32 v3, 5, v{LN}
    v_lshlrev_b32 v3, 2, v3
    v_lshrrev_b64 v[16:17], v3, v[16:17]
    s_sub_u32 s62, 0, s17
    v_and_b32 v16, s62, v16
    v_not_b32 v16, v16
    v_not_b32 v17, v17
    """)
    for g in range(4):
        for r in range(4):
            a(f"v_bfe_i32 v{SS[0]+4*g+r}, v17, {8*g+r}, 1")
            a(f"v_lshlrev_b32 v{SS[0]+4*g+r}, 23, v{SS[0]+4*g+r}")
    for g in range(4):
        for r in range(4):
            if g < 2:
                a(f"v_mov_b32 v{SS[1]+4*g+r}, 0x{NEGINF:x}")
            else:
                a(f"v_bfe_i32 v{SS[1]+4*g+r}, v16, {8*g+r}, 1")
                a(f"v_lshlrev_b32 v{SS[1]+4*g+r}, 23, v{SS[1]+4*g+r}")
    a("s_waitcnt vmcnt(0)")
    mf16(a, SS[0], KB1[0], QB1, vr(SS[0], 16))
    mf16(a, SS[1], KB1[1], QB1, vr(SS[1], 16))
    mf8(a, SS[0], KB2[0], QB2, vr(SS[0], 16))
    mf8(a, SS[1], KB2[1], QB2, vr(SS[1], 16))
    a("s_nop 15")
    regs = [SS[0] + i for i in range(16)] + [SS[1] + 8 + i for i in range(8)]
    a(f"v_max3_f32 v{T0}, v{regs[0]}, v{regs[1]}, v{regs[2]}")
    for i in range(3, 23, 2):
        a(f"v_max3_f32 v{T0}, v{T0}, v{regs[i]}, v{regs[i+1]}")
    a(f"v_max_f32 v{T0}, v{T0}, v{regs[23]}")
    half_bcast_max(a, T0, T1)
    for r in regs:
        a(f"v_sub_f32 v{r}, v{r}, v{T0}")
    for r in regs:
        a(f"v_exp_f32 v{r}, v{r}")
    a("s_nop 0")
    for j in range(8):
        a(f"v_cvt_pk_bf16_f32 v{P+j}, v{SS[0]+2*j}, v{SS[0]+2*j+1}")
    for j in range(4):
        a(f"v_cvt_pk_bf16_f32 v{QB1+j}, v{SS[1]+8+2*j}, v{SS[1]+8+2*j+1}")
    a("s_nop 1")
    mf16(a, O, VB[0], P, "0")
    mf16(a, O, VB[0] + 4, P + 4, vr(O, 16))
    mf16(a, O, VB[1], QB1, vr(O, 16))
    a(f"""
    s_add_u32 s70, s56, s15
    s_add_u32 s71, s57, s15
    s_nop 15
    """)
    out_epilogue(a, 52, 70, 71)
    a(f"""
    s_add_u32 s8, s8, 4
    s_add_u32 s15, s15, {4*40960}
    s_add_u32 s74, s74, 1
    s_cmp_lt_u32 s74, 2
    s_cbranch_scc1 K2_BLOOP
    """)
    a("K2_DONE:")
    if STAMP:
        a("s_waitcnt vmcnt(0)")
    stamp(a, 7); stamp_real(a, 8)
    stamp_flush(a, 1, 9, 7, 20, 0)
    stamp_flush(a, 1, 9, 7, 20, 7, slot=1)
    a("K2_END:")
    a("s_endpgm")
    return a.text(), kd(NAME, 128, 100)
```

```python
from common import *

NAME = "k3_proj_kernel"
WIMG = 102400
DEPTH = int(os.environ.get("DEPTH", "8"))

def gen():
    a = Asm()
    a(entry(NAME))
    a(f"""
    s_cmp_ge_u32 s2, 256
    s_cbranch_scc1 K3_END
    s_load_dwordx2 s[16:17], s[0:1], 48
    s_load_dwordx2 s[20:21], s[0:1], 64
    """)
    stamp(a, 0); stamp_real(a, 1)
    a(f"""
    s_and_b32 s3, s2, 7
    s_lshr_b32 s4, s2, 3
    s_lshr_b32 s5, s3, 2
    s_and_b32 s6, s3, 3
    s_lshl_b32 s6, s6, 2
    s_and_b32 s7, s4, 3
    s_add_u32 s8, s6, s7
    s_lshr_b32 s9, s4, 2
    v_lshrrev_b32 v1, 6, v0
    v_and_b32 v2, 63, v0
    s_lshl_b32 s10, s5, 3
    v_readfirstlane_b32 s11, v1
    s_add_u32 s10, s10, s9
    s_mul_i32 s10, s10, {WIMG}
    v_lshlrev_b32 v3, 4, v2
    s_cmp_ge_u32 s11, 4
    s_cbranch_scc0 K3_COMPUTE
    """)
    a(f"""
    s_sub_u32 s12, s11, 4
    s_lshl_b32 s35, s12, 10
    s_add_u32 s34, s10, s35
    s_waitcnt lgkmcnt(0)
    s_add_u32 s22, s20, {WS_WP}
    s_addc_u32 s23, s21, 0
    """)
    srd(a, 28, 22, 23, 16 * WIMG)
    def chunk(c):
        for i in range(5):
            a(f"s_add_u32 m0, s35, {c*20480 + i*4096}")
            a(f"s_add_u32 s36, s34, {c*20480 + i*4096}")
            a(f"buffer_load_dwordx4 v3, s[28:31], s36 offen lds")
    chunk(0); chunk(1)
    a("s_waitcnt vmcnt(5)\ns_barrier")
    if os.environ.get("K3ALL"):
        chunk(2); chunk(3); chunk(4)
        a("s_waitcnt vmcnt(15)\ns_barrier")
    else:
        chunk(2); chunk(3)
        a("s_waitcnt vmcnt(10)\ns_barrier")
        chunk(4)
    a("s_waitcnt vmcnt(10)\ns_barrier")
    a("s_waitcnt vmcnt(5)\ns_barrier")
    a("s_waitcnt vmcnt(0)\ns_barrier")
    a("s_endpgm")
    a("K3_COMPUTE:")
    dbg_stamp(a, 2, 4, 11, 0, 146)
    ACC = 0
    FW = [40, 60]
    FX = 80
    LN = FX + 8 * DEPTH
    VA, VW, VW2 = LN + 1, LN + 2, LN + 3
    a(f"""
    v_mov_b32 v{LN}, v2
    v_lshrrev_b32 v4, 4, v2
    v_and_b32 v5, 15, v2
    v_lshlrev_b32 v4, 9, v4
    v_lshl_add_u32 v{VA}, v5, 4, v4
    s_mul_i32 s43, s5, {SEC}
    s_lshl_b32 s46, s8, 2
    s_add_u32 s46, s46, s11
    s_mul_i32 s47, s46, 40960
    s_add_u32 s43, s43, {WS_O[0]}
    s_waitcnt lgkmcnt(0)
    s_add_u32 s44, s20, s43
    s_addc_u32 s45, s21, 0
    """)
    srd(a, 24, 44, 45, SEC)
    def tok(s):
        x = FX + 8 * (s % DEPTH)
        a(f"s_add_u32 s48, s47, {s*2048}")
        a(f"buffer_load_dwordx4 {vr(x,4)}, v{VA}, s[24:27], s48 offen")
        a(f"buffer_load_dwordx4 {vr(x+4,4)}, v{VA}, s[24:27], s48 offen offset:256")
    for s in range(DEPTH): tok(s)
    a(f"v_mov_b32 v{VW}, v3")
    a(f"v_add_u32 v{VW2}, 51200, v3")
    for r in range(40):
        a(f"v_mov_b32 v{ACC+r}, 0")
    def reads(s):
        base, o = (VW, s * 5120) if s < 10 else (VW2, (s - 10) * 5120)
        return [f"ds_read_b128 {vr(FW[s&1]+4*f,4)}, v{base} offset:{o + f*1024}" for f in range(5)]
    stamp(a, 2)
    a("s_barrier")
    stamp(a, 3)
    for r in reads(0): a(r)
    for s in range(20):
        fs = s & 1
        a("s_waitcnt lgkmcnt(0)")
        if s % 4 == 3 and s < 19:
            a("s_barrier")
        a(f"s_waitcnt vmcnt({2 * (min(DEPTH, 20 - s) - 1)})")
        R = reads(s + 1) if s + 1 < 20 else []
        x = FX + 8 * (s % DEPTH)
        for f in range(5):
            for tb in range(2):
                acc = vr(ACC + 4*(5*tb + f), 4)
                a(f"v_mfma_f32_16x16x32_bf16 {acc}, {vr(FW[fs]+4*f,4)}, {vr(x+4*tb,4)}, {acc}")
            if R: a(R[f])
        if s + DEPTH < 20: tok(s + DEPTH)
    a("s_nop 7")
    stamp(a, 4)
    srd(a, 52, 16, 17, OUTB)
    a(f"""
    s_mul_i32 s49, s11, 5120
    s_add_u32 s49, s49, {WIMG}
    v_and_b32 v64, 15, v{LN}
    v_lshrrev_b32 v65, 4, v{LN}
    v_mul_u32_u24 v66, 160, v64
    v_lshl_add_u32 v66, v65, 3, v66
    v_add_u32 v66, s49, v66
    s_lshl_b32 s50, s46, 5
    s_mul_i32 s50, s50, 2560
    s_mul_i32 s51, s5, 1280
    s_add_u32 s50, s50, s51
    s_mul_i32 s51, s9, 160
    s_add_u32 s50, s50, s51
    v_lshlrev_b32 v67, 4, v{LN}
    v_add_u32 v67, s49, v67
    s_movk_i32 s51, 6554
    """)
    for i in range(5):
        a(f"v_add_u32 v68, {64*i}, v{LN}")
        a(f"v_mul_lo_u32 v69, v68, s51")
        a(f"v_lshrrev_b32 v69, 16, v69")
        a(f"v_mul_u32_u24 v70, 10, v69")
        a(f"v_sub_u32 v70, v68, v70")
        a(f"v_mul_u32_u24 v69, 2560, v69")
        a(f"v_lshl_add_u32 v{72+i}, v70, 4, v69")
    for tb in range(2):
        for f in range(5):
            acc = ACC + 4*(5*tb + f)
            t = 80 + 2*(5*tb + f)
            a(f"v_cvt_pk_bf16_f32 v{t}, v{acc}, v{acc+1}")
            a(f"v_cvt_pk_bf16_f32 v{t+1}, v{acc+2}, v{acc+3}")
            a(f"ds_write_b64 v66, {vr(t,2)} offset:{tb*16*160 + f*32}")
    a("s_waitcnt lgkmcnt(0)")
    for i in range(5):
        a(f"ds_read_b128 {vr(104+4*i,4)}, v67 offset:{i*1024}")
    for i in range(5):
        a(f"s_waitcnt lgkmcnt({4-i})")
        a(f"buffer_store_dwordx4 {vr(104+4*i,4)}, v{72+i}, s[52:55], s50 offen")
    if STAMP:
        a("s_waitcnt vmcnt(0)")
    if DBG: a("s_waitcnt vmcnt(0)")
    dbg_stamp(a, 2, 5, 11, 0, 2)
    stamp(a, 5); stamp_real(a, 6)
    stamp_flush(a, 2, 7, 11, 20, 0)
    a("K3_END:")
    a("s_endpgm")
    return a.text(), kd(NAME, max(148, LN + 4), 100)
```

```python
from common import *

NAME = "k1_qkv_kernel"
BUF = 49152
WOFF = 32768

def gen():
    a = Asm()
    a(entry(NAME))
    a(f"""
    s_cmp_ge_u32 s2, 256
    s_cbranch_scc1 K1_END
    s_and_b32 s3, s2, 7
    s_lshr_b32 s4, s2, 3
    s_lshr_b32 s5, s3, 2
    s_bfe_u32 s6, s3, 0x10001
    s_and_b32 s7, s3, 1
    s_and_b32 s8, s4, 3
    s_lshl_b32 s6, s6, 2
    s_add_u32 s8, s8, s6
    s_lshr_b32 s9, s4, 2
    s_lshl_b32 s7, s7, 3
    s_add_u32 s9, s9, s7
    s_cmp_ge_u32 s9, 15
    s_cbranch_scc1 K1_END
    s_mul_i32 s10, s5, 24
    s_add_u32 s12, s0, s10
    s_addc_u32 s13, s1, 0
    s_load_dwordx4 s[16:19], s[12:13], 0
    s_load_dwordx2 s[20:21], s[0:1], 64
    """)
    stamp(a, 0); stamp_real(a, 1)
    a(f"""
    v_lshrrev_b32 v1, 6, v0
    v_and_b32 v2, 63, v0
    s_nop 0
    v_readfirstlane_b32 s11, v1
    s_waitcnt lgkmcnt(0)
    """)
    srd(a, 24, 16, 17, XB)
    srd(a, 28, 18, 19, WB)
    a("s_cmp_ge_u32 s11, 4")
    a("s_cbranch_scc0 K1_COMPUTE")
    a(f"""
    s_sub_u32 s12, s11, 4
    v_lshrrev_b32 v3, 3, v2
    v_mul_u32_u24 v4, 1280, v3
    v_lshrrev_b32 v5, 4, v2
    s_and_b32 s13, s12, 1
    s_lshl_b32 s13, s13, 2
    v_add_u32 v6, s13, v5
    v_and_b32 v7, 7, v2
    v_xor_b32 v7, v7, v6
    v_lshlrev_b32 v7, 4, v7
    v_add_u32 v10, v4, v7
    v_mul_u32_u24 v4, 3840, v5
    v_lshlrev_b32 v6, 2, v5
    v_and_b32 v7, 15, v2
    v_xor_b32 v7, v7, v6
    v_lshlrev_b32 v7, 4, v7
    v_add_u32 v11, v4, v7
    s_lshl_b32 s14, s8, 8
    s_lshl_b32 s15, s12, 3
    s_add_u32 s14, s14, s15
    s_mul_i32 s33, s14, 1280
    s_mul_i32 s34, s12, {4*3840}
    s_lshl_b32 s15, s9, 8
    s_add_u32 s34, s34, s15
    s_lshl_b32 s35, s12, 10
    """)
    if ROT == 10:
        a(f"""
        s_and_b32 s41, s4, 3
        s_mul_i32 s41, s41, 8
        s_lshr_b32 s41, 0x07020500, s41
        s_and_b32 s41, s41, 0xff
        s_lshr_b32 s42, s4, 2
        s_add_u32 s41, s41, s42
        s_cmp_ge_u32 s41, 10
        s_cselect_b32 s42, 10, 0
        s_sub_u32 s41, s41, s42
        """)
    elif ROT == 0:
        a("s_mov_b32 s41, 0")
    else:
        tab = {2: [0, 5], 3: [0, 3, 6], 4: [0, 3, 5, 8], 5: [0, 2, 4, 6, 8]}[ROT]
        n = len(tab); lut = 0; hi = 0
        for i in range(11):
            if i < 8: lut |= tab[i % n] << (4 * i)
            else: hi |= tab[i % n] << (4 * (i - 8))
        a(f"""
        s_and_b32 s41, s4, 3
        s_lshr_b32 s42, s4, 2
        s_add_u32 s41, s41, s42
        s_lshl_b32 s41, s41, 2
        s_mov_b32 s42, 0x{lut:x}
        s_mov_b32 s43, 0x{hi:x}
        s_lshr_b64 s[42:43], s[42:43], s41
        s_and_b32 s41, s42, 15
        """)
    def issue(st, lo=0, hi=12):
        buf = st % 3
        if lo == 0:
            a("s_lshl_b32 s39, s41, 7")
            a("s_add_u32 s39, s39, s33")
            a(f"s_mul_i32 s40, s41, {64*3840}")
            a("s_add_u32 s40, s40, s34")
            a("s_add_u32 s41, s41, 1")
            a("s_cmp_eq_u32 s41, 10")
            a("s_cselect_b32 s41, 0, s41")
        order = [("x", 0), ("x", 1), ("w", 0), ("x", 2), ("x", 3), ("w", 1), ("x", 4), ("x", 5), ("w", 2), ("x", 6), ("x", 7), ("w", 3)]
        for kind, i in order[lo:hi]:
            if kind == "x":
                a(f"s_add_u32 m0, s35, {buf*BUF + i*4096}")
                a(f"s_add_u32 s36, s39, {i*32*1280}")
                a(f"buffer_load_dwordx4 v10, s[24:27], s36 offen lds")
            else:
                a(f"s_add_u32 m0, s35, {buf*BUF + WOFF + i*4096}")
                a(f"s_add_u32 s36, s40, {i*16*3840}")
                a(f"buffer_load_dwordx4 v11, s[28:31], s36 offen lds")
    issue(0); stamp(a, 2); issue(1, 0, EARLY); stamp(a, 3)
    for st in range(10):
        if st == 0:
            a(f"s_waitcnt vmcnt({EARLY})")
        else:
            a(f"s_waitcnt vmcnt({12 if st < 9 else 0})")
        if st in (0, 1, 3, 5, 7): stamp(a, {0: 4, 1: 5, 3: 6, 5: 7, 7: 8}[st])
        a("s_barrier")
        if st == 0 and EARLY < 12:
            issue(1, EARLY, 12)
        if st + 2 < 10:
            issue(st + 2)
    stamp_real(a, 9)
    stamp_flush(a, 0, 10, 11, 20, 4, slot=1)
    a("s_endpgm")
    a("K1_COMPUTE:")
    ACC = 0
    FX = [128, 152]
    FW = [144, 168]
    BX = [176, 180]
    BW = [184, 186]
    LN = 188
    a(f"""
    v_mov_b32 v{LN}, v2
    s_lshr_b32 s12, s11, 1
    s_and_b32 s13, s11, 1
    v_and_b32 v3, 31, v2
    v_lshrrev_b32 v4, 5, v2
    s_lshl_b32 s14, s12, 7
    v_add_u32 v5, s14, v3
    v_lshlrev_b32 v5, 7, v5
    v_bfe_u32 v6, v3, 1, 3
    """)
    for s in range(4):
        a(f"v_add_u32 v7, {2*s}, v4")
        a(f"v_xor_b32 v7, v7, v6")
        a(f"v_lshlrev_b32 v7, 4, v7")
        a(f"v_add_u32 v{BX[0]+s}, v5, v7")
        a(f"v_add_u32 v{BX[1]+s}, {2*BUF}, v{BX[0]+s}")
    a(f"""
    v_and_b32 v5, 15, v2
    v_lshrrev_b32 v6, 2, v5
    v_lshlrev_b32 v7, 3, v4
    v_add_u32 v7, v7, v6
    v_lshlrev_b32 v7, 8, v7
    v_bfe_u32 v8, v2, 4, 1
    v_lshlrev_b32 v8, 5, v8
    v_add_u32 v7, v7, v8
    v_and_b32 v8, 3, v5
    v_lshlrev_b32 v8, 3, v8
    v_add_u32 v7, v7, v8
    v_add_u32 v7, {WOFF}, v7
    s_lshl_b32 s14, s13, 1
    """)
    for f in range(2):
        a(f"s_add_u32 s15, s14, {f}")
        a(f"v_xor_b32 v8, s15, v6")
        a(f"v_lshlrev_b32 v8, 6, v8")
        a(f"v_add_u32 v{BW[0]+f}, v7, v8")
        a(f"v_add_u32 v{BW[1]+f}, {2*BUF}, v{BW[0]+f}")
    for r in range(128):
        a(f"v_mov_b32 v{ACC+r}, 0")

    def reads(gs):
        st, s = divmod(gs, 4)
        buf = st % 3
        fs = gs & 1
        bs = 1 if buf == 2 else 0
        bo = 0 if buf == 2 else buf * BUF
        R = []
        for f in range(2):
            for half in range(2):
                R.append(f"ds_read_b64_tr_b16 {vr(FW[fs]+4*f+2*half,2)}, v{BW[bs]+f} offset:{bo + (16*s+4*half)*256}")
        for tb in range(4):
            R.append(f"ds_read_b128 {vr(FX[fs]+4*tb,4)}, v{BX[bs]+s} offset:{bo + tb*4096}")
        return R

    def mainloop(vtile):
        stamp(a, 2)
        a("s_barrier")
        stamp(a, 3)
        for r in reads(0): a(r)
        for gs in range(40):
            st, s = divmod(gs, 4)
            fs = gs & 1
            a("s_waitcnt lgkmcnt(0)")
            if s == 3 and st < 9:
                a("s_barrier")
            R = reads(gs + 1) if gs + 1 < 40 else []
            for i in range(8):
                tb, f = i >> 1, i & 1
                acc = vr(ACC + (tb*2+f)*16, 16)
                x = vr(FX[fs]+4*tb, 4); w = vr(FW[fs]+4*f, 4)
                if vtile:
                    a(f"v_mfma_f32_32x32x16_bf16 {acc}, {x}, {w}, {acc}")
                else:
                    a(f"v_mfma_f32_32x32x16_bf16 {acc}, {w}, {x}, {acc}")
                if i < len(R): a(R[i])
        a("s_nop 15")
        stamp(a, 4)

    def fin():
        if STAMP:
            a("s_waitcnt vmcnt(0)")
        stamp(a, 5); stamp_real(a, 6)
        stamp_flush(a, 0, 7, 11, 20, 0)

    a("s_cmp_ge_u32 s9, 10")
    a("s_cbranch_scc1 K1_VTILE")
    mainloop(False)
    a(f"""
    s_cmp_lt_u32 s9, 5
    s_cselect_b32 s41, 0, {SEC}
    s_cselect_b32 s42, 0, 5
    s_sub_u32 s42, s9, s42
    s_mul_i32 s43, s5, {WS_QK[1]}
    s_add_u32 s41, s41, s43
    s_add_u32 s44, s20, s41
    s_addc_u32 s45, s21, 0
    """)
    srd(a, 48, 44, 45, SEC)
    a(f"""
    s_lshl_b32 s46, s8, 3
    s_lshl_b32 s47, s12, 2
    s_add_u32 s46, s46, s47
    s_mul_i32 s46, s46, 40960
    s_lshl_b32 s47, s42, 4
    s_lshl_b32 s52, s13, 3
    s_add_u32 s47, s47, s52
    s_lshl_b32 s47, s47, 9
    s_add_u32 s46, s46, s47
    v_lshlrev_b32 v189, 4, v{LN}
    """)
    T = 128
    def qk_epi(scale):
        k = 0
        for tb in range(4):
            for f in range(2):
                acc = ACC + (tb*2+f)*16
                if scale:
                    for r in range(0, 16, 2):
                        a(f"v_pk_mul_f32 {vr(acc+r,2)}, {vr(acc+r,2)}, s[56:57]")
                for u in range(2):
                    t = T + 4*(k % 4); k += 1
                    for j in range(4):
                        a(f"v_cvt_pk_bf16_f32 v{t+j}, v{acc+8*u+2*j}, v{acc+8*u+2*j+1}")
                    a(f"s_add_u32 s53, s46, {tb*40960 + (f*4+2*u)*512}")
                    a("s_nop 0")
                    a(f"v_permlane32_swap_b32 v{t}, v{t+2}")
                    a(f"v_permlane32_swap_b32 v{t+1}, v{t+3}")
                    a(f"buffer_store_dwordx4 {vr(t,4)}, v189, s[48:51], s53 offen {STF}")
    a(f"s_mov_b32 s56, {f32bits(CQ)}")
    a(f"s_mov_b32 s57, {f32bits(CQ)}")
    a("s_cmp_lt_u32 s9, 5")
    a("s_cbranch_scc0 K1_KTILE")
    qk_epi(True)
    fin()
    a("s_endpgm")
    a("K1_KTILE:")
    qk_epi(False)
    fin()
    a("s_endpgm")
    a("K1_VTILE:")
    mainloop(True)
    a(f"""
    s_mul_i32 s43, s5, {SEC}
    s_add_u32 s43, s43, {WS_V[0]}
    s_add_u32 s44, s20, s43
    s_addc_u32 s45, s21, 0
    """)
    srd(a, 48, 44, 45, SEC)
    a(f"""
    s_lshl_b32 s46, s8, 3
    s_lshl_b32 s47, s12, 2
    s_add_u32 s46, s46, s47
    s_mul_i32 s46, s46, 1280
    s_sub_u32 s42, s9, 10
    s_lshl_b32 s42, s42, 7
    s_lshl_b32 s47, s13, 6
    s_add_u32 s42, s42, s47
    v_and_b32 v130, 31, v{LN}
    v_lshrrev_b32 v131, 5, v{LN}
    v_mul_u32_u24 v131, 320, v131
    s_mov_b32 s52, 52429
    """)
    for f in range(2):
        a(f"""
        v_add_u32 v132, s42, v130
        v_add_u32 v132, {32*f}, v132
        v_mul_lo_u32 v133, v132, s52
        v_lshrrev_b32 v133, 20, v133
        v_mul_u32_u24 v134, 20, v133
        v_sub_u32 v134, v132, v134
        v_lshlrev_b32 v134, 4, v134
        v_add_u32 v134, v134, v131
        v_mov_b32 v135, 81920
        v_mul_lo_u32 v133, v133, v135
        v_add_u32 v{189+f}, v133, v134
        """)
    T = 136
    k = 0
    for tb in range(4):
        for f in range(2):
            acc = ACC + (tb*2+f)*16
            for u in range(2):
                t = T + 4*(k % 4); k += 1
                for j in range(4):
                    a(f"v_cvt_pk_bf16_f32 v{t+j}, v{acc+8*u+2*j}, v{acc+8*u+2*j+1}")
                a(f"s_add_u32 s53, s46, {tb*1280 + u*640}")
                a(f"buffer_store_dwordx4 {vr(t,4)}, v{189+f}, s[48:51], s53 offen {STF}")
    fin()
    a("K1_END:")
    a("s_endpgm")
    return a.text(), kd(NAME, 192, 100)
```

```python
class Asm:
    def __init__(self):
        self.L = []
    def __call__(self, s):
        for x in s.strip("\n").split("\n"):
            self.L.append(x.strip() if not x.strip().endswith(":") else x.strip())
    def text(self):
        return "\n".join(("" if l.endswith(":") else "    ") + l for l in self.L) + "\n"

def vr(b, n):
    return f"v[{b}:{b+n-1}]" if n > 1 else f"v{b}"
def sr(b, n):
    return f"s[{b}:{b+n-1}]" if n > 1 else f"s{b}"

S, D, H, DH = 2048, 640, 32, 20
XB = S * D * 2
WB = D * 3 * D * 2
WOB = D * D * 2
OUTB = S * 2 * D * 2
SEC = 64 * 40960
WS_QK = [0, 2 * SEC]
WS_V = [4 * SEC, 5 * SEC]
WS_O = [6 * SEC, 7 * SEC]
WS_END = 8 * SEC
WS_WP = 8 * SEC
CQ = (20 ** -0.5) * 1.4426950408889634

def f32bits(x):
    import struct
    return struct.unpack("<I", struct.pack("<f", x))[0]

def kd(name, vgpr, sgpr=96):
    acc = (vgpr + 3) // 4 * 4
    return f""".p2align 6
.amdhsa_kernel {name}
  .amdhsa_next_free_vgpr {vgpr}
  .amdhsa_next_free_sgpr {sgpr}
  .amdhsa_accum_offset {acc}
  .amdhsa_group_segment_fixed_size 0
  .amdhsa_kernarg_size 72
  .amdhsa_user_sgpr_count 2
  .amdhsa_user_sgpr_kernarg_segment_ptr 1
  .amdhsa_system_sgpr_workgroup_id_x 1
.end_amdhsa_kernel
"""
def entry(name):
    return f".globl {name}\n.p2align 8\n.type {name},@function\n{name}:\n"

def srd(a, d, lo, hi, nbytes):
    a(f"s_mov_b32 s{d}, s{lo}")
    a(f"s_and_b32 s{d+1}, s{hi}, 0xffff")
    a(f"s_mov_b32 s{d+2}, {nbytes}")
    a(f"s_mov_b32 s{d+3}, 0x20000")

import os
STAMP = bool(int(os.environ.get("STAMP", "0")))
STAMP_BASE = 9 * SEC
def stamp(a, idx):
    if STAMP:
        a(f"s_memtime s[{80+2*idx}:{81+2*idx}]")
def stamp_real(a, idx):
    if STAMP:
        a(f"s_memrealtime s[{80+2*idx}:{81+2*idx}]")
def stamp_flush(a, kidx, n, wavereg, wsreg_lo, wave_sel=0, slot=None):
    if not STAMP: return
    lab = f"STAMP_SKIP_{kidx}_{wave_sel}_{stamp_flush.c}"; stamp_flush.c += 1
    a(f"s_waitcnt lgkmcnt(0)")
    a(f"s_cmp_eq_u32 s{wavereg}, {wave_sel}")
    a(f"s_cbranch_scc0 {lab}")
    a(f"s_add_u32 s76, s{wsreg_lo}, {STAMP_BASE + kidx*256*256 + (wave_sel if slot is None else slot)*128}")
    a(f"s_addc_u32 s77, s{wsreg_lo+1}, 0")
    a(f"s_and_b32 s77, s77, 0xffff")
    a(f"s_mov_b32 s78, 65536")
    a(f"s_mov_b32 s79, 0x20000")
    a(f"s_lshl_b32 s75, s2, 8")
    a(f"v_mov_b32 v2, s75")
    for i in range(n):
        a(f"v_mov_b32 v3, s{80+2*i}")
        a(f"buffer_store_dword v3, v2, s[76:79], 0 offen offset:{8*i}")
        a(f"v_mov_b32 v3, s{81+2*i}")
        a(f"buffer_store_dword v3, v2, s[76:79], 0 offen offset:{8*i+4}")
    a(f"{lab}:")
stamp_flush.c = 0

STF = os.environ.get("STF", "")
PRIO = int(os.environ.get("PRIO", "8"))
ROT = int(os.environ.get("ROT", "4"))
EARLY = int(os.environ.get("EARLY", "4"))

DBG = bool(int(os.environ.get("DBG", "0")))
def dbg_stamp(a, kidx, slot, wavereg, wave_sel, vt, stride=512):
    if not DBG: return
    lab = f"DBG_SKIP_{kidx}_{slot}_{dbg_stamp.c}"; dbg_stamp.c += 1
    a(f"""
    s_cmp_eq_u32 s2, 0
    s_cbranch_scc0 {lab}
    s_cmp_eq_u32 s{wavereg}, {wave_sel}
    s_cbranch_scc0 {lab}
    s_load_dwordx2 s[76:77], s[0:1], 56
    s_memrealtime s[98:99]
    s_waitcnt lgkmcnt(0)
    s_sub_u32 s76, s76, {kidx*stride}
    s_subb_u32 s77, s77, 0
    s_and_b32 s77, s77, 0xffff
    s_mov_b32 s78, 256
    s_mov_b32 s79, 0x20000
    v_mov_b32 v{vt}, s98
    v_mov_b32 v{vt+1}, 0
    buffer_store_dword v{vt}, v{vt+1}, s[76:79], 0 offen offset:{4*slot}
    {lab}:
    """)
dbg_stamp.c = 0
BSPLIT = int(os.environ.get("BSPLIT", "0"))
LOCK = int(os.environ.get("LOCK", "0"))
```

```python
from common import *

NAME = "k1_qkv_kernel"
BUF = 49152
WOFF = 32768

def gen():
    a = Asm()
    a(entry(NAME))
    a(f"""
    s_cmp_ge_u32 s2, 256
    s_cbranch_scc1 K1_END
    s_and_b32 s3, s2, 7
    s_lshr_b32 s4, s2, 3
    s_lshr_b32 s5, s3, 2
    s_bfe_u32 s6, s3, 0x10001
    s_and_b32 s7, s3, 1
    s_and_b32 s8, s4, 3
    s_lshl_b32 s6, s6, 2
    s_add_u32 s8, s8, s6
    s_lshr_b32 s9, s4, 2
    s_lshl_b32 s7, s7, 3
    s_add_u32 s9, s9, s7
    s_cmp_ge_u32 s9, 15
    s_cbranch_scc1 K1_END
    s_mul_i32 s10, s5, 24
    s_add_u32 s12, s0, s10
    s_addc_u32 s13, s1, 0
    s_load_dwordx4 s[16:19], s[12:13], 0
    s_load_dwordx2 s[20:21], s[0:1], 64
    """)
    stamp(a, 0); stamp_real(a, 1)
    a(f"""
    v_lshrrev_b32 v1, 6, v0
    v_and_b32 v2, 63, v0
    s_nop 0
    v_readfirstlane_b32 s11, v1
    s_waitcnt lgkmcnt(0)
    """)
    dbg_stamp(a, 0, 0, 11, 0, 190)
    srd(a, 24, 16, 17, XB)
    srd(a, 28, 18, 19, WB)
    a("s_cmp_ge_u32 s11, 4")
    a("s_cbranch_scc0 K1_COMPUTE")
    a(f"""
    s_sub_u32 s12, s11, 4
    v_lshrrev_b32 v3, 3, v2
    v_mul_u32_u24 v4, 1280, v3
    v_lshrrev_b32 v5, 4, v2
    s_and_b32 s13, s12, 1
    s_lshl_b32 s13, s13, 2
    v_add_u32 v6, s13, v5
    v_and_b32 v7, 7, v2
    v_xor_b32 v7, v7, v6
    v_lshlrev_b32 v7, 4, v7
    v_add_u32 v10, v4, v7
    v_mul_u32_u24 v4, 3840, v5
    v_lshlrev_b32 v6, 2, v5
    v_and_b32 v7, 15, v2
    v_xor_b32 v7, v7, v6
    v_lshlrev_b32 v7, 4, v7
    v_add_u32 v11, v4, v7
    s_lshl_b32 s14, s8, 8
    s_lshl_b32 s15, s12, 3
    s_add_u32 s14, s14, s15
    s_mul_i32 s33, s14, 1280
    s_mul_i32 s34, s12, {4*3840}
    s_lshl_b32 s15, s9, 8
    s_add_u32 s34, s34, s15
    s_lshl_b32 s35, s12, 10
    """)
    if ROT == 10:
        a(f"""
        s_and_b32 s41, s4, 3
        s_mul_i32 s41, s41, 8
        s_lshr_b32 s41, 0x07020500, s41
        s_and_b32 s41, s41, 0xff
        s_lshr_b32 s42, s4, 2
        s_add_u32 s41, s41, s42
        s_cmp_ge_u32 s41, 10
        s_cselect_b32 s42, 10, 0
        s_sub_u32 s41, s41, s42
        """)
    elif ROT == 0:
        a("s_mov_b32 s41, 0")
    else:
        tab = {2: [0, 5], 3: [0, 3, 6], 4: [0, 3, 5, 8], 5: [0, 2, 4, 6, 8]}[ROT]
        n = len(tab); lut = 0; hi = 0
        for i in range(11):
            if i < 8: lut |= tab[i % n] << (4 * i)
            else: hi |= tab[i % n] << (4 * (i - 8))
        a(f"""
        s_and_b32 s41, s4, 3
        s_lshr_b32 s42, s4, 2
        s_add_u32 s41, s41, s42
        s_lshl_b32 s41, s41, 2
        s_mov_b32 s42, 0x{lut:x}
        s_mov_b32 s43, 0x{hi:x}
        s_lshr_b64 s[42:43], s[42:43], s41
        s_and_b32 s41, s42, 15
        """)
    def issue(st, lo=0, hi=12):
        buf = st % 3
        if lo == 0:
            a("s_lshl_b32 s39, s41, 7")
            a("s_add_u32 s39, s39, s33")
            a(f"s_mul_i32 s40, s41, {64*3840}")
            a("s_add_u32 s40, s40, s34")
            a("s_add_u32 s41, s41, 1")
            a("s_cmp_eq_u32 s41, 10")
            a("s_cselect_b32 s41, 0, s41")
        order = [("x", 0), ("x", 1), ("w", 0), ("x", 2), ("x", 3), ("w", 1), ("x", 4), ("x", 5), ("w", 2), ("x", 6), ("x", 7), ("w", 3)]
        for kind, i in order[lo:hi]:
            if kind == "x":
                a(f"s_add_u32 m0, s35, {buf*BUF + i*4096}")
                a(f"s_add_u32 s36, s39, {i*32*1280}")
                a(f"buffer_load_dwordx4 v10, s[24:27], s36 offen lds")
            else:
                a(f"s_add_u32 m0, s35, {buf*BUF + WOFF + i*4096}")
                a(f"s_add_u32 s36, s40, {i*16*3840}")
                a(f"buffer_load_dwordx4 v11, s[28:31], s36 offen lds")
    issue(0); stamp(a, 2); issue(1, 0, EARLY); stamp(a, 3)
    for st in range(10):
        if st == 0:
            a(f"s_waitcnt vmcnt({EARLY})")
        else:
            a(f"s_waitcnt vmcnt({12 if st < 9 else 0})")
        if st in (0, 1, 3, 5, 7): stamp(a, {0: 4, 1: 5, 3: 6, 5: 7, 7: 8}[st])
        a("s_barrier")
        if st == 0 and EARLY < 12:
            issue(1, EARLY, 12)
        if st + 2 < 10:
            issue(st + 2)
    stamp_real(a, 9)
    stamp_flush(a, 0, 10, 11, 20, 4, slot=1)
    a("s_endpgm")
    a("K1_COMPUTE:")
    ACC = 0
    FX = [128, 152]
    FW = [144, 168]
    BX = [176, 180]
    BW = [184, 186]
    LN = 188
    a(f"""
    v_mov_b32 v{LN}, v2
    s_lshr_b32 s12, s11, 1
    s_and_b32 s13, s11, 1
    v_and_b32 v3, 31, v2
    v_lshrrev_b32 v4, 5, v2
    s_lshl_b32 s14, s12, 7
    v_add_u32 v5, s14, v3
    v_lshlrev_b32 v5, 7, v5
    v_bfe_u32 v6, v3, 1, 3
    """)
    for s in range(4):
        a(f"v_add_u32 v7, {2*s}, v4")
        a(f"v_xor_b32 v7, v7, v6")
        a(f"v_lshlrev_b32 v7, 4, v7")
        a(f"v_add_u32 v{BX[0]+s}, v5, v7")
        a(f"v_add_u32 v{BX[1]+s}, {2*BUF}, v{BX[0]+s}")
    a(f"""
    v_and_b32 v5, 15, v2
    v_lshrrev_b32 v6, 2, v5
    v_lshlrev_b32 v7, 3, v4
    v_add_u32 v7, v7, v6
    v_lshlrev_b32 v7, 8, v7
    v_bfe_u32 v8, v2, 4, 1
    v_lshlrev_b32 v8, 5, v8
    v_add_u32 v7, v7, v8
    v_and_b32 v8, 3, v5
    v_lshlrev_b32 v8, 3, v8
    v_add_u32 v7, v7, v8
    v_add_u32 v7, {WOFF}, v7
    s_lshl_b32 s14, s13, 1
    """)
    for f in range(2):
        a(f"s_add_u32 s15, s14, {f}")
        a(f"v_xor_b32 v8, s15, v6")
        a(f"v_lshlrev_b32 v8, 6, v8")
        a(f"v_add_u32 v{BW[0]+f}, v7, v8")
        a(f"v_add_u32 v{BW[1]+f}, {2*BUF}, v{BW[0]+f}")
    for r in range(128):
        a(f"v_mov_b32 v{ACC+r}, 0")

    def reads(gs):
        st, s = divmod(gs, 4)
        buf = st % 3
        fs = gs & 1
        bs = 1 if buf == 2 else 0
        bo = 0 if buf == 2 else buf * BUF
        R = []
        for f in range(2):
            for half in range(2):
                R.append(f"ds_read_b64_tr_b16 {vr(FW[fs]+4*f+2*half,2)}, v{BW[bs]+f} offset:{bo + (16*s+4*half)*256}")
        for tb in range(4):
            R.append(f"ds_read_b128 {vr(FX[fs]+4*tb,4)}, v{BX[bs]+s} offset:{bo + tb*4096}")
        return R

    def mainloop(vtile):
        stamp(a, 2)
        a("s_barrier")
        stamp(a, 3)
        dbg_stamp(a, 0, 6, 11, 0, 190)
        for r in reads(0): a(r)
        for gs in range(40):
            st, s = divmod(gs, 4)
            fs = gs & 1
            a("s_waitcnt lgkmcnt(0)")
            if s == 3 and st < 9:
                a("s_barrier")
            R = reads(gs + 1) if gs + 1 < 40 else []
            for i in range(8):
                tb, f = i >> 1, i & 1
                acc = vr(ACC + (tb*2+f)*16, 16)
                x = vr(FX[fs]+4*tb, 4); w = vr(FW[fs]+4*f, 4)
                if vtile:
                    a(f"v_mfma_f32_32x32x16_bf16 {acc}, {x}, {w}, {acc}")
                else:
                    a(f"v_mfma_f32_32x32x16_bf16 {acc}, {w}, {x}, {acc}")
                if i < len(R): a(R[i])
        a("s_nop 15")
        dbg_stamp(a, 0, 7, 11, 0, 190)
        stamp(a, 4)

    def fin():
        if STAMP:
            a("s_waitcnt vmcnt(0)")
        stamp(a, 5); stamp_real(a, 6)
        stamp_flush(a, 0, 7, 11, 20, 0)
        if DBG: a("s_waitcnt vmcnt(0)")
        dbg_stamp(a, 0, 1, 11, 0, 2)

    a("s_cmp_ge_u32 s9, 10")
    a("s_cbranch_scc1 K1_VTILE")
    mainloop(False)
    a(f"""
    s_cmp_lt_u32 s9, 5
    s_cselect_b32 s41, 0, {SEC}
    s_cselect_b32 s42, 0, 5
    s_sub_u32 s42, s9, s42
    s_mul_i32 s43, s5, {WS_QK[1]}
    s_add_u32 s41, s41, s43
    s_add_u32 s44, s20, s41
    s_addc_u32 s45, s21, 0
    """)
    srd(a, 48, 44, 45, SEC)
    a(f"""
    s_lshl_b32 s46, s8, 3
    s_lshl_b32 s47, s12, 2
    s_add_u32 s46, s46, s47
    s_mul_i32 s46, s46, 40960
    s_lshl_b32 s47, s42, 4
    s_lshl_b32 s52, s13, 3
    s_add_u32 s47, s47, s52
    s_lshl_b32 s47, s47, 9
    s_add_u32 s46, s46, s47
    v_lshlrev_b32 v189, 4, v{LN}
    """)
    T = 128
    def qk_epi(scale):
        k = 0
        for tb in range(4):
            for f in range(2):
                acc = ACC + (tb*2+f)*16
                if scale:
                    for r in range(0, 16, 2):
                        a(f"v_pk_mul_f32 {vr(acc+r,2)}, {vr(acc+r,2)}, s[56:57]")
                for u in range(2):
                    t = T + 4*(k % 4); k += 1
                    for j in range(4):
                        a(f"v_cvt_pk_bf16_f32 v{t+j}, v{acc+8*u+2*j}, v{acc+8*u+2*j+1}")
                    a(f"s_add_u32 s53, s46, {tb*40960 + (f*4+2*u)*512}")
                    a("s_nop 0")
                    a(f"v_permlane32_swap_b32 v{t}, v{t+2}")
                    a(f"v_permlane32_swap_b32 v{t+1}, v{t+3}")
                    a(f"buffer_store_dwordx4 {vr(t,4)}, v189, s[48:51], s53 offen {STF}")
    a(f"s_mov_b32 s56, {f32bits(CQ)}")
    a(f"s_mov_b32 s57, {f32bits(CQ)}")
    a("s_cmp_lt_u32 s9, 5")
    a("s_cbranch_scc0 K1_KTILE")
    qk_epi(True)
    fin()
    a("s_endpgm")
    a("K1_KTILE:")
    qk_epi(False)
    fin()
    a("s_endpgm")
    a("K1_VTILE:")
    mainloop(True)
    a(f"""
    s_mul_i32 s43, s5, {SEC}
    s_add_u32 s43, s43, {WS_V[0]}
    s_add_u32 s44, s20, s43
    s_addc_u32 s45, s21, 0
    """)
    srd(a, 48, 44, 45, SEC)
    a(f"""
    s_lshl_b32 s46, s8, 3
    s_lshl_b32 s47, s12, 2
    s_add_u32 s46, s46, s47
    s_mul_i32 s46, s46, 1280
    s_sub_u32 s42, s9, 10
    s_lshl_b32 s42, s42, 7
    s_lshl_b32 s47, s13, 6
    s_add_u32 s42, s42, s47
    v_and_b32 v130, 31, v{LN}
    v_lshrrev_b32 v131, 5, v{LN}
    v_mul_u32_u24 v131, 320, v131
    s_mov_b32 s52, 52429
    """)
    for f in range(2):
        a(f"""
        v_add_u32 v132, s42, v130
        v_add_u32 v132, {32*f}, v132
        v_mul_lo_u32 v133, v132, s52
        v_lshrrev_b32 v133, 20, v133
        v_mul_u32_u24 v134, 20, v133
        v_sub_u32 v134, v132, v134
        v_lshlrev_b32 v134, 4, v134
        v_add_u32 v134, v134, v131
        v_mov_b32 v135, 81920
        v_mul_lo_u32 v133, v133, v135
        v_add_u32 v{189+f}, v133, v134
        """)
    T = 136
    k = 0
    for tb in range(4):
        for f in range(2):
            acc = ACC + (tb*2+f)*16
            for u in range(2):
                t = T + 4*(k % 4); k += 1
                for j in range(4):
                    a(f"v_cvt_pk_bf16_f32 v{t+j}, v{acc+8*u+2*j}, v{acc+8*u+2*j+1}")
                a(f"s_add_u32 s53, s46, {tb*1280 + u*640}")
                a(f"buffer_store_dwordx4 {vr(t,4)}, v{189+f}, s[48:51], s53 offen {STF}")
    fin()
    a("K1_END:")
    a("s_endpgm")
    return a.text(), kd(NAME, 192, 100)
```

```python
from common import *

NAME = "k2_attn_kernel"
LN = 1
Q1, Q2 = 4, 8
AK1, AK2, AV = 10, 11, 12
T0, T1, T2 = 13, 14, 15
NEGM = 16
SS = [32, 48]
P = 64
QB1, QB2 = 72, 76
O = 80
KB1 = [96, 104]
KB2 = [100, 108]
VB = [112, 120]
LDS_K2 = 65536
LDS_V = 81920
NEGINF = 0xff800000

def mf16(a, d, x, y, c):
    a(f"v_mfma_f32_32x32x16_bf16 {vr(d,16)}, {vr(x,4)}, {vr(y,4)}, {c}")
def mf8(a, d, x, y, c):
    a(f"v_mfma_f32_32x32x8_bf16 {vr(d,16)}, {vr(x,2)}, {vr(y,2)}, {c}")

def half_bcast_max(a, v, t):
    a(f"v_mov_b32 v{t}, v{v}")
    a("s_nop 1")
    a(f"v_permlane32_swap_b32 v{v}, v{t}")
    a("s_nop 1")
    a(f"v_max_f32 v{v}, v{v}, v{t}")

def out_epilogue(a, srd_o, soff_main, soff_rem):
    a(f"""
    v_mov_b32 v{T0}, v{O+8}
    v_mov_b32 v{T1}, v{O+8}
    s_nop 1
    v_permlane32_swap_b32 v{T0}, v{T1}
    s_nop 1
    v_rcp_f32 v{T1}, v{T1}
    s_nop 1
    """)
    for r in range(12):
        a(f"v_mul_f32 v{O+r}, v{O+r}, v{T1}")
    for j in range(6):
        a(f"v_cvt_pk_bf16_f32 v{P+j}, v{O+2*j}, v{O+2*j+1}")
    a(f"""
    v_lshlrev_b32 v{T0}, 4, v{LN}
    buffer_store_dwordx4 {vr(P,4)}, v{T0}, s[{srd_o}:{srd_o+3}], s{soff_main} offen {STF}
    v_mov_b32 v{T2}, 0x40000000
    v_cmp_gt_u32 vcc, 32, v{LN}
    s_nop 1
    v_cndmask_b32 v{T2}, v{T2}, v{T0}, vcc
    buffer_store_dwordx2 {vr(P+4,2)}, v{T2}, s[{srd_o}:{srd_o+3}], s{soff_rem} offen {STF}
    """)

def tile(a, t, first_bar=False, last=False):
    c, n = t & 1, (t + 1) & 1
    Sc, Sn = SS[c], SS[n]
    E = lambda i: a(f"v_exp_f32 v{Sc+i}, v{Sc+i}")
    C = lambda j: a(f"v_cvt_pk_bf16_f32 v{P+j}, v{Sc+2*j}, v{Sc+2*j+1}")
    a("s_waitcnt lgkmcnt(0)")
    mf16(a, Sn, KB1[n], Q1, vr(NEGM, 16))
    E(0); E(1)
    mf16(a, O, VB[n] + 4, P + 4, vr(O, 16))
    a("s_mov_b64 exec, s[60:61]")
    a(f"ds_read_b128 {vr(VB[n],4)}, v{AV} offset:{(t+1)*1280}")
    a(f"ds_read_b128 {vr(VB[n]+4,4)}, v{AV} offset:{(t+1)*1280+640}")
    a("s_mov_b64 exec, -1")
    E(2); E(3); C(0); E(4); C(1)
    mf8(a, Sn, KB2[n], Q2, vr(Sn, 16))
    a(f"ds_read_b128 {vr(KB1[c],4)}, v{AK1} offset:{(t+2)*1024}")
    a(f"ds_read_b64 {vr(KB2[c],2)}, v{AK2} offset:{(t+2)*256}")
    E(5); E(6); E(7); C(2); E(8); C(3); E(9); E(10)
    mf16(a, O, VB[c], P, vr(O, 16))
    E(11); C(4); E(12); E(13); E(14); E(15); C(5); C(6); C(7)

def gen():
    a = Asm()
    a(entry(NAME))
    a(f"""
    s_cmp_ge_u32 s2, 256
    s_cbranch_scc1 K2_END
    s_load_dwordx2 s[20:21], s[0:1], 64
    """)
    stamp(a, 0); stamp_real(a, 1)
    a(f"""
    s_and_b32 s3, s2, 7
    s_lshr_b32 s4, s2, 3
    s_and_b32 s5, s4, 3
    s_lshl_b32 s3, s3, 2
    s_add_u32 s5, s5, s3
    s_lshr_b32 s6, s4, 2
    v_lshrrev_b32 v2, 6, v0
    v_and_b32 v{LN}, 63, v0
    s_mul_i32 s16, s5, 81920
    v_readfirstlane_b32 s7, v2
    s_lshr_b32 s9, s5, 1
    s_and_b32 s10, s5, 1
    s_mul_i32 s11, s9, 5
    s_mul_i32 s12, s10, 3
    s_add_u32 s12, s12, s11
    s_lshl_b32 s12, s12, 9
    s_add_u32 s13, s11, 2
    s_lshl_b32 s13, s13, 9
    s_lshl_b32 s14, s10, 3
    s_add_u32 s13, s13, s14
    s_lshl_b32 s8, s6, 3
    s_add_u32 s8, s8, s7
    s_mul_i32 s15, s8, 40960
    v_lshlrev_b32 v{AK1}, 4, v{LN}
    s_cmp_ge_u32 s7, 8
    s_cbranch_scc0 K2_COMPUTE
    """)
    def mk(d, off):
        a(f"s_add_u32 s22, s20, {off}")
        a(f"s_addc_u32 s23, s21, 0")
        srd(a, d, 22, 23, SEC)
    a(f"""
    s_sub_u32 s7, s7, 8
    v_lshrrev_b32 v2, 1, v{LN}
    v_lshlrev_b32 v2, 4, v2
    v_and_b32 v3, 1, v{LN}
    v_lshlrev_b32 v3, 2, v3
    v_add_u32 v2, v2, v3
    s_mul_i32 s65, s7, {2*40960}
    s_add_u32 s66, s65, s13
    s_add_u32 s65, s65, s12
    s_lshl_b32 s67, s7, 11
    s_lshl_b32 s69, s7, 9
    s_lshl_b32 s70, s7, 10
    s_add_u32 s68, s70, s16
    s_and_b32 s71, s7, 1
    s_lshl_b32 s71, s71, 10
    s_add_u32 s72, s71, s16
    s_waitcnt lgkmcnt(0)
    """)
    mk(28, WS_QK[0] + SEC); mk(32, WS_V[0])
    def grp(g):
        for i in range(2):
            a(f"s_add_u32 m0, s67, {g*8192 + i*1024}")
            a(f"s_add_u32 s62, s65, {(g*8+i)*40960}")
            a(f"buffer_load_dwordx4 v{AK1}, s[28:31], s62 offen lds")
            a(f"s_add_u32 m0, s69, {LDS_K2 + g*2048 + i*256}")
            a(f"s_add_u32 s62, s66, {(g*8+i)*40960}")
            a(f"buffer_load_dword v2, s[28:31], s62 offen lds")
        for i in range(2):
            a(f"s_add_u32 m0, s70, {LDS_V + g*10240 + i*4096}")
            a(f"s_add_u32 s62, s68, {g*10240 + i*4096}")
            a(f"buffer_load_dwordx4 v{AK1}, s[32:35], s62 offen lds")
        a(f"s_add_u32 m0, s71, {LDS_V + g*10240 + 8192}")
        a(f"s_add_u32 s62, s72, {g*10240 + 8192}")
        a(f"buffer_load_dwordx4 v{AK1}, s[32:35], s62 offen lds")
    grp(0); grp(1)
    a("s_waitcnt vmcnt(7)")
    a("s_barrier")
    for g in range(2, 8): grp(g)
    a("s_waitcnt vmcnt(35)")
    a("s_barrier")
    a("s_waitcnt vmcnt(0)")
    a("s_barrier")
    a(f"""
    s_lshl_b32 s40, s2, 2
    s_add_u32 s40, s40, s7
    s_load_dwordx2 s[44:45], s[0:1], 16
    s_load_dwordx2 s[46:47], s[0:1], 40
    s_add_u32 s22, s20, {WS_WP}
    s_addc_u32 s23, s21, 0
    """)
    srd(a, 36, 22, 23, 1600 * 1024)
    a(f"""
    v_lshrrev_b32 v4, 4, v{LN}
    v_and_b32 v5, 15, v{LN}
    s_waitcnt lgkmcnt(0)
    K2_WPLOOP:
    s_mul_i32 s41, s40, 5243
    s_lshr_b32 s41, s41, 19
    s_mul_i32 s42, s41, 100
    s_sub_u32 s42, s40, s42
    s_mul_i32 s43, s42, 205
    s_lshr_b32 s43, s43, 10
    s_mul_i32 s48, s43, 5
    s_sub_u32 s48, s42, s48
    s_cmp_ge_u32 s41, 8
    s_cselect_b32 s52, s46, s44
    s_cselect_b32 s53, s47, s45
    s_and_b32 s41, s41, 7
    s_mul_i32 s41, s41, 160
    s_lshl_b32 s48, s48, 5
    s_add_u32 s41, s41, s48
    s_lshl_b32 s43, s43, 2
    """)
    srd(a, 56, 52, 53, WOB)
    a(f"""
    v_add_u32 v6, s43, v4
    v_mul_u32_u24 v7, 205, v6
    v_lshrrev_b32 v7, 10, v7
    v_mul_u32_u24 v8, 5, v7
    v_sub_u32 v8, v6, v8
    v_mul_u32_u24 v7, 40, v7
    v_lshrrev_b32 v9, 1, v8
    v_mul_u32_u24 v9, 20, v9
    v_and_b32 v11, 1, v8
    v_lshl_add_u32 v9, v11, 2, v9
    v_cmp_eq_u32 vcc, 4, v8
    v_mov_b32 v11, 8
    v_cndmask_b32 v9, v9, 16, vcc
    v_cndmask_b32 v11, v11, 20, vcc
    v_add_u32 v7, v7, v9
    v_add_u32 v11, v7, v11
    v_mul_u32_u24 v7, 1280, v7
    v_mul_u32_u24 v11, 1280, v11
    v_lshl_add_u32 v7, v5, 1, v7
    v_lshl_add_u32 v11, v5, 1, v11
    """)
    for e in range(8):
        a(f"buffer_load_ushort v{16+e}, v{7 if e < 4 else 11}, s[56:59], s41 offen offset:{(e&3)*1280}")
    a("s_lshl_b32 s48, s40, 10")
    a("s_waitcnt vmcnt(0)")
    for j in range(4):
        a(f"v_lshl_or_b32 v{24+j}, v{17+2*j}, 16, v{16+2*j}")
    a(f"""
    buffer_store_dwordx4 v[24:27], v{AK1}, s[36:39], s48 offen
    s_add_u32 s40, s40, 1024
    s_cmp_lt_u32 s40, 1600
    s_cbranch_scc1 K2_WPLOOP
    """)
    a("s_endpgm")
    a("K2_COMPUTE:")
    dbg_stamp(a, 1, 2, 7, 7, 126)
    a(f"""
    v_and_b32 v2, 31, v{LN}
    v_lshrrev_b32 v3, 5, v{LN}
    v_lshlrev_b32 v{T0}, 4, v2
    v_mov_b32 v{T1}, 0x40000000
    v_cmp_gt_u32 vcc, 32, v{LN}
    s_add_u32 s62, s15, s12
    s_add_u32 s63, s15, s13
    v_cndmask_b32 v{T1}, v{T1}, v{T0}, vcc
    s_waitcnt lgkmcnt(0)
    """)
    mk(24, WS_QK[0])
    a(f"""
    buffer_load_dwordx4 {vr(Q1,4)}, v{AK1}, s[24:27], s62 offen
    buffer_load_dwordx2 {vr(Q2,2)}, v{T1}, s[24:27], s63 offen
    v_cmp_gt_u32 s[60:61], 20, v2
    v_cmp_eq_u32 vcc, 20, v2
    v_mov_b32 v{T2}, 0x3f803f80
    v_lshlrev_b32 v{AK2}, 3, v2
    v_cndmask_b32 v{T2}, 0, v{T2}, vcc
    v_add_u32 v{AK2}, {LDS_K2}, v{AK2}
    """)
    for r in range(16):
        a(f"v_mov_b32 v{VB[0]+r}, v{T2}")
    mk(36, WS_O[0])
    a(f"""
    s_lshl_b32 s56, s10, 1
    s_add_u32 s56, s56, s11
    s_lshl_b32 s56, s56, 9
    s_add_u32 s57, s11, 4
    s_lshl_b32 s57, s57, 9
    s_add_u32 s57, s57, s14
    s_add_u32 s70, s56, s15
    s_add_u32 s71, s57, s15
    s_mov_b32 s72, 5
    s_mov_b32 s73, 0
    """)
    if PRIO:
        a("s_setprio 1\ns_cmp_lt_u32 s7, 4\ns_cbranch_scc0 K2_NOPRIO\ns_setprio 2\nK2_NOPRIO:")
    a("s_waitcnt vmcnt(0)")
    stamp(a, 2)
    a("s_barrier")
    stamp(a, 3)
    a(f"""
    ds_read_b128 {vr(KB1[0],4)}, v{AK1}
    ds_read_b64 {vr(KB2[0],2)}, v{AK2}
    s_waitcnt lgkmcnt(0)
    """)
    mf16(a, SS[0], KB1[0], Q1, "0")
    mf8(a, SS[0], KB2[0], Q2, vr(SS[0], 16))
    a("s_nop 15")
    a(f"v_max3_f32 v{T0}, v{SS[0]}, v{SS[0]+1}, v{SS[0]+2}")
    for i in range(3, 15, 2):
        a(f"v_max3_f32 v{T0}, v{T0}, v{SS[0]+i}, v{SS[0]+i+1}")
    a(f"v_max_f32 v{T0}, v{T0}, v{SS[0]+15}")
    half_bcast_max(a, T0, T1)
    a("K2_RESTART:")
    for r in range(16):
        a(f"v_sub_f32 v{NEGM+r}, 0, v{T0}")
    for r in range(16):
        a(f"v_mov_b32 v{O+r}, 0")
    for r in range(4):
        a(f"v_mov_b32 v{P+4+r}, 0")
    a(f"""
    v_lshlrev_b32 v{AK1}, 4, v{LN}
    v_and_b32 v2, 31, v{LN}
    v_lshlrev_b32 v{AK2}, 3, v2
    v_add_u32 v{AK2}, {LDS_K2}, v{AK2}
    v_lshrrev_b32 v3, 5, v{LN}
    v_mul_u32_u24 v{AV}, 320, v3
    v_lshlrev_b32 v2, 4, v2
    v_add_u32 v{AV}, v{AV}, v2
    v_add_u32 v{AV}, {LDS_V}, v{AV}
    ds_read_b128 {vr(KB1[0],4)}, v{AK1}
    ds_read_b64 {vr(KB2[0],2)}, v{AK2}
    ds_read_b128 {vr(KB1[1],4)}, v{AK1} offset:1024
    ds_read_b64 {vr(KB2[1],2)}, v{AK2} offset:256
    s_mov_b64 exec, s[60:61]
    ds_read_b128 {vr(VB[0],4)}, v{AV}
    ds_read_b128 {vr(VB[0]+4,4)}, v{AV} offset:640
    ds_read_b128 {vr(VB[1]+4,4)}, v{AV} offset:640
    s_mov_b64 exec, -1
    s_waitcnt lgkmcnt(0)
    """)
    mf16(a, SS[0], KB1[0], Q1, vr(NEGM, 16))
    mf8(a, SS[0], KB2[0], Q2, vr(SS[0], 16))
    a("s_nop 15")
    a("s_mov_b32 s74, 0")
    dbg_stamp(a, 1, 8, 7, 7, 2)
    stamp(a, 4)
    a("K2_LOOP:")
    for t in range(8):
        if t == 6:
            a("""
            s_bitcmp1_b32 s72, 0
            s_cbranch_scc0 K2_NOBAR
            s_barrier
            K2_NOBAR:
            s_lshr_b32 s72, s72, 1
            """)
        tile(a, t)
    a(f"""
    v_add_u32 v{AK1}, 8192, v{AK1}
    v_add_u32 v{AK2}, 2048, v{AK2}
    v_add_u32 v{AV}, 10240, v{AV}
    s_add_u32 s74, s74, 1
    """)
    if 0 < PRIO < 8:
        a(f"""
        s_cmp_eq_u32 s74, {PRIO}
        s_cselect_b32 s62, s7, 4
        s_cmp_lt_u32 s62, 4
        s_cbranch_scc0 K2_KEEPPRIO
        s_setprio 0
        K2_KEEPPRIO:
        """)
    a(f"""
    s_cmp_lt_u32 s74, 8
    s_cbranch_scc1 K2_LOOP
    s_nop 1
    """)
    mf16(a, O, VB[1] + 4, P + 4, vr(O, 16))
    a("s_waitcnt lgkmcnt(0)")
    a("s_nop 15")
    a(f"v_mov_b32 v{T1}, 0")
    for r in range(12):
        a(f"v_fma_f32 v{T1}, v{O+r}, 0, v{T1}")
    a(f"""
    v_mov_b32 v{T2}, 0x5f800000
    v_cmp_gt_u32 vcc, 32, v{LN}
    s_nop 1
    v_cndmask_b32 v{T0}, v{O+8}, 0, vcc
    v_add_f32 v{T0}, v{T0}, v{T1}
    v_cmp_nle_f32 vcc, v{T0}, v{T2}
    s_nop 4
    s_cbranch_vccz K2_FIN
    s_cmp_eq_u32 s73, 0
    s_cbranch_scc0 K2_FIN
    s_mov_b32 s73, 1
    """)
    a(f"""
    v_lshlrev_b32 v{AK1}, 4, v{LN}
    v_and_b32 v2, 31, v{LN}
    v_lshlrev_b32 v{AK2}, 3, v2
    v_add_u32 v{AK2}, {LDS_K2}, v{AK2}
    v_mov_b32 v{T0}, 0x{NEGINF:x}
    s_mov_b32 s74, 0
    K2_MAXLOOP:
    ds_read_b128 {vr(KB1[0],4)}, v{AK1}
    ds_read_b64 {vr(KB2[0],2)}, v{AK2}
    s_waitcnt lgkmcnt(0)
    """)
    mf16(a, SS[0], KB1[0], Q1, "0")
    mf8(a, SS[0], KB2[0], Q2, vr(SS[0], 16))
    a("s_nop 15")
    for i in range(0, 16, 2):
        a(f"v_max3_f32 v{T0}, v{T0}, v{SS[0]+i}, v{SS[0]+i+1}")
    a(f"""
    v_add_u32 v{AK1}, 1024, v{AK1}
    v_add_u32 v{AK2}, 256, v{AK2}
    s_add_u32 s74, s74, 1
    s_cmp_lt_u32 s74, 64
    s_cbranch_scc1 K2_MAXLOOP
    """)
    half_bcast_max(a, T0, T1)
    a("s_branch K2_RESTART")
    a("K2_FIN:")
    stamp(a, 5)
    out_epilogue(a, 36, 70, 71)
    stamp(a, 6)
    a("s_cmp_lt_u32 s7, 4")
    a("s_cbranch_scc0 K2_DONE")
    mk(40, WS_QK[1]); mk(44, WS_QK[1] + SEC); mk(48, WS_V[1]); mk(52, WS_O[1])
    a("s_mov_b32 s74, 0")
    a("K2_BLOOP:")
    a(f"""
    v_and_b32 v2, 31, v{LN}
    v_lshrrev_b32 v3, 5, v{LN}
    v_lshlrev_b32 v{AK1}, 4, v{LN}
    v_lshlrev_b32 v{T0}, 4, v2
    v_mov_b32 v{T1}, 0x40000000
    v_cmp_gt_u32 vcc, 32, v{LN}
    v_mul_u32_u24 v{AV}, 320, v3
    v_add_u32 v{AV}, v{AV}, v{T0}
    v_cndmask_b32 v{T1}, v{T1}, v{T0}, vcc
    s_cmp_eq_u32 s8, 0
    s_cselect_b32 s17, 0, 1
    s_sub_u32 s18, s8, s17
    s_mul_i32 s19, s18, 40960
    s_add_u32 s62, s15, s12
    buffer_load_dwordx4 {vr(QB1,4)}, v{AK1}, s[40:43], s62 offen
    buffer_load_dwordx4 {vr(KB1[0],4)}, v{AK1}, s[44:47], s62 offen
    s_add_u32 s62, s15, s13
    buffer_load_dwordx2 {vr(QB2,2)}, v{T1}, s[40:43], s62 offen
    buffer_load_dwordx2 {vr(KB2[0],2)}, v{T0}, s[44:47], s62 offen
    s_add_u32 s62, s19, s12
    buffer_load_dwordx4 {vr(KB1[1],4)}, v{AK1}, s[44:47], s62 offen
    s_add_u32 s62, s19, s13
    buffer_load_dwordx2 {vr(KB2[1],2)}, v{T0}, s[44:47], s62 offen
    s_mul_i32 s63, s8, 1280
    s_add_u32 s63, s63, s16
    s_mul_i32 s64, s18, 1280
    s_add_u32 s64, s64, s16
    s_mov_b64 exec, s[60:61]
    buffer_load_dwordx4 {vr(VB[0],4)}, v{AV}, s[48:51], s63 offen
    buffer_load_dwordx4 {vr(VB[0]+4,4)}, v{AV}, s[48:51], s63 offen offset:640
    buffer_load_dwordx4 {vr(VB[1],4)}, v{AV}, s[48:51], s64 offen offset:640
    s_mov_b64 exec, -1
    """)
    a(f"""
    v_add_u32 v3, 18, v2
    v_mov_b32 v16, 0x5555
    v_mov_b32 v17, 0
    v_lshlrev_b64 v[16:17], v3, v[16:17]
    v_lshrrev_b32 v3, 5, v{LN}
    v_lshlrev_b32 v3, 2, v3
    v_lshrrev_b64 v[16:17], v3, v[16:17]
    s_sub_u32 s62, 0, s17
    v_and_b32 v16, s62, v16
    v_not_b32 v16, v16
    v_not_b32 v17, v17
    """)
    for g in range(4):
        for r in range(4):
            a(f"v_bfe_i32 v{SS[0]+4*g+r}, v17, {8*g+r}, 1")
            a(f"v_lshlrev_b32 v{SS[0]+4*g+r}, 23, v{SS[0]+4*g+r}")
    for g in range(4):
        for r in range(4):
            if g < 2:
                a(f"v_mov_b32 v{SS[1]+4*g+r}, 0x{NEGINF:x}")
            else:
                a(f"v_bfe_i32 v{SS[1]+4*g+r}, v16, {8*g+r}, 1")
                a(f"v_lshlrev_b32 v{SS[1]+4*g+r}, 23, v{SS[1]+4*g+r}")
    a("s_waitcnt vmcnt(0)")
    mf16(a, SS[0], KB1[0], QB1, vr(SS[0], 16))
    mf16(a, SS[1], KB1[1], QB1, vr(SS[1], 16))
    mf8(a, SS[0], KB2[0], QB2, vr(SS[0], 16))
    mf8(a, SS[1], KB2[1], QB2, vr(SS[1], 16))
    a("s_nop 15")
    regs = [SS[0] + i for i in range(16)] + [SS[1] + 8 + i for i in range(8)]
    a(f"v_max3_f32 v{T0}, v{regs[0]}, v{regs[1]}, v{regs[2]}")
    for i in range(3, 23, 2):
        a(f"v_max3_f32 v{T0}, v{T0}, v{regs[i]}, v{regs[i+1]}")
    a(f"v_max_f32 v{T0}, v{T0}, v{regs[23]}")
    half_bcast_max(a, T0, T1)
    for r in regs:
        a(f"v_sub_f32 v{r}, v{r}, v{T0}")
    for r in regs:
        a(f"v_exp_f32 v{r}, v{r}")
    a("s_nop 0")
    for j in range(8):
        a(f"v_cvt_pk_bf16_f32 v{P+j}, v{SS[0]+2*j}, v{SS[0]+2*j+1}")
    for j in range(4):
        a(f"v_cvt_pk_bf16_f32 v{QB1+j}, v{SS[1]+8+2*j}, v{SS[1]+8+2*j+1}")
    a("s_nop 1")
    mf16(a, O, VB[0], P, "0")
    mf16(a, O, VB[0] + 4, P + 4, vr(O, 16))
    mf16(a, O, VB[1], QB1, vr(O, 16))
    a(f"""
    s_add_u32 s70, s56, s15
    s_add_u32 s71, s57, s15
    s_nop 15
    """)
    out_epilogue(a, 52, 70, 71)
    a(f"""
    s_add_u32 s8, s8, 4
    s_add_u32 s15, s15, {4*40960}
    s_add_u32 s74, s74, 1
    s_cmp_lt_u32 s74, 2
    s_cbranch_scc1 K2_BLOOP
    """)
    a("K2_DONE:")
    if STAMP:
        a("s_waitcnt vmcnt(0)")
    if DBG: a("s_waitcnt vmcnt(0)")
    dbg_stamp(a, 1, 3, 7, 7, 2)
    stamp(a, 7); stamp_real(a, 8)
    stamp_flush(a, 1, 9, 7, 20, 0)
    stamp_flush(a, 1, 9, 7, 20, 7, slot=1)
    a("K2_END:")
    a("s_endpgm")
    return a.text(), kd(NAME, 128, 100)
```

```python
from common import *

NAME = "k1_qkv_kernel"
BUF = 49152
WOFF = 32768

def gen():
    a = Asm()
    a(entry(NAME))
    a(f"""
    s_cmp_ge_u32 s2, 256
    s_cbranch_scc1 K1_END
    s_and_b32 s3, s2, 7
    s_lshr_b32 s4, s2, 3
    s_lshr_b32 s5, s3, 2
    s_bfe_u32 s6, s3, 0x10001
    s_and_b32 s7, s3, 1
    s_and_b32 s8, s4, 3
    s_lshl_b32 s6, s6, 2
    s_add_u32 s8, s8, s6
    s_lshr_b32 s9, s4, 2
    s_lshl_b32 s7, s7, 3
    s_add_u32 s9, s9, s7
    s_cmp_ge_u32 s9, 15
    s_cbranch_scc1 K1_END
    s_mul_i32 s10, s5, 24
    s_add_u32 s12, s0, s10
    s_addc_u32 s13, s1, 0
    s_load_dwordx4 s[16:19], s[12:13], 0
    s_load_dwordx2 s[20:21], s[0:1], 64
    """)
    stamp(a, 0); stamp_real(a, 1)
    a(f"""
    v_lshrrev_b32 v1, 6, v0
    v_and_b32 v2, 63, v0
    s_nop 0
    v_readfirstlane_b32 s11, v1
    s_waitcnt lgkmcnt(0)
    """)
    dbg_stamp(a, 0, 0, 11, 0, 190)
    srd(a, 24, 16, 17, XB)
    srd(a, 28, 18, 19, WB)
    a("s_cmp_ge_u32 s11, 4")
    a("s_cbranch_scc0 K1_COMPUTE")
    a(f"""
    s_sub_u32 s12, s11, 4
    v_lshrrev_b32 v3, 3, v2
    v_mul_u32_u24 v4, 1280, v3
    v_lshrrev_b32 v5, 4, v2
    s_and_b32 s13, s12, 1
    s_lshl_b32 s13, s13, 2
    v_add_u32 v6, s13, v5
    v_and_b32 v7, 7, v2
    v_xor_b32 v7, v7, v6
    v_lshlrev_b32 v7, 4, v7
    v_add_u32 v10, v4, v7
    v_mul_u32_u24 v4, 3840, v5
    v_lshlrev_b32 v6, 2, v5
    v_and_b32 v7, 15, v2
    v_xor_b32 v7, v7, v6
    v_lshlrev_b32 v7, 4, v7
    v_add_u32 v11, v4, v7
    s_lshl_b32 s14, s8, 8
    s_lshl_b32 s15, s12, 3
    s_add_u32 s14, s14, s15
    s_mul_i32 s33, s14, 1280
    s_mul_i32 s34, s12, {4*3840}
    s_lshl_b32 s15, s9, 8
    s_add_u32 s34, s34, s15
    s_lshl_b32 s35, s12, 10
    """)
    if ROT == 10:
        a(f"""
        s_and_b32 s41, s4, 3
        s_mul_i32 s41, s41, 8
        s_lshr_b32 s41, 0x07020500, s41
        s_and_b32 s41, s41, 0xff
        s_lshr_b32 s42, s4, 2
        s_add_u32 s41, s41, s42
        s_cmp_ge_u32 s41, 10
        s_cselect_b32 s42, 10, 0
        s_sub_u32 s41, s41, s42
        """)
    elif ROT == 0:
        a("s_mov_b32 s41, 0")
    else:
        tab = {2: [0, 5], 3: [0, 3, 6], 4: [0, 3, 5, 8], 5: [0, 2, 4, 6, 8]}[ROT]
        if LOCK: tab = [LOCK + (i * (10 - LOCK)) // ROT for i in range(ROT)]
        n = len(tab); lut = 0; hi = 0
        for i in range(11):
            if i < 8: lut |= tab[i % n] << (4 * i)
            else: hi |= tab[i % n] << (4 * (i - 8))
        a(f"""
        s_and_b32 s41, s4, 3
        s_lshr_b32 s42, s4, 2
        s_add_u32 s41, s41, s42
        s_lshl_b32 s41, s41, 2
        s_mov_b32 s42, 0x{lut:x}
        s_mov_b32 s43, 0x{hi:x}
        s_lshr_b64 s[42:43], s[42:43], s41
        s_and_b32 s41, s42, 15
        """)
    if LOCK:
        a("s_mov_b32 s45, s41")
        a("s_mov_b32 s41, 0")
    def issue(st, lo=0, hi=12):
        buf = st % 3
        if lo == 0:
            a("s_lshl_b32 s39, s41, 7")
            a("s_add_u32 s39, s39, s33")
            a(f"s_mul_i32 s40, s41, {64*3840}")
            a("s_add_u32 s40, s40, s34")
            if LOCK and st == LOCK - 1:
                a("s_mov_b32 s41, s45")
            else:
                a("s_add_u32 s41, s41, 1")
                a("s_cmp_eq_u32 s41, 10")
                a(f"s_cselect_b32 s41, {LOCK}, s41")
        order = [("x", 0), ("x", 1), ("w", 0), ("x", 2), ("x", 3), ("w", 1), ("x", 4), ("x", 5), ("w", 2), ("x", 6), ("x", 7), ("w", 3)]
        for kind, i in order[lo:hi]:
            if kind == "x":
                a(f"s_add_u32 m0, s35, {buf*BUF + i*4096}")
                a(f"s_add_u32 s36, s39, {i*32*1280}")
                a(f"buffer_load_dwordx4 v10, s[24:27], s36 offen lds")
            else:
                a(f"s_add_u32 m0, s35, {buf*BUF + WOFF + i*4096}")
                a(f"s_add_u32 s36, s40, {i*16*3840}")
                a(f"buffer_load_dwordx4 v11, s[28:31], s36 offen lds")
    issue(0); stamp(a, 2); issue(1, 0, EARLY); stamp(a, 3)
    for st in range(10):
        if st == 0:
            a(f"s_waitcnt vmcnt({EARLY})")
        else:
            a(f"s_waitcnt vmcnt({12 if st < 9 else 0})")
        if st in (0, 1, 3, 5, 7): stamp(a, {0: 4, 1: 5, 3: 6, 5: 7, 7: 8}[st])
        a("s_barrier")
        if st == 0 and EARLY < 12:
            issue(1, EARLY, 12)
        if st + 2 < 10:
            issue(st + 2)
    stamp_real(a, 9)
    stamp_flush(a, 0, 10, 11, 20, 4, slot=1)
    a("s_endpgm")
    a("K1_COMPUTE:")
    ACC = 0
    FX = [128, 152]
    FW = [144, 168]
    BX = [176, 180]
    BW = [184, 186]
    LN = 188
    a(f"""
    v_mov_b32 v{LN}, v2
    s_lshr_b32 s12, s11, 1
    s_and_b32 s13, s11, 1
    v_and_b32 v3, 31, v2
    v_lshrrev_b32 v4, 5, v2
    s_lshl_b32 s14, s12, 7
    v_add_u32 v5, s14, v3
    v_lshlrev_b32 v5, 7, v5
    v_bfe_u32 v6, v3, 1, 3
    """)
    for s in range(4):
        a(f"v_add_u32 v7, {2*s}, v4")
        a(f"v_xor_b32 v7, v7, v6")
        a(f"v_lshlrev_b32 v7, 4, v7")
        a(f"v_add_u32 v{BX[0]+s}, v5, v7")
        a(f"v_add_u32 v{BX[1]+s}, {2*BUF}, v{BX[0]+s}")
    a(f"""
    v_and_b32 v5, 15, v2
    v_lshrrev_b32 v6, 2, v5
    v_lshlrev_b32 v7, 3, v4
    v_add_u32 v7, v7, v6
    v_lshlrev_b32 v7, 8, v7
    v_bfe_u32 v8, v2, 4, 1
    v_lshlrev_b32 v8, 5, v8
    v_add_u32 v7, v7, v8
    v_and_b32 v8, 3, v5
    v_lshlrev_b32 v8, 3, v8
    v_add_u32 v7, v7, v8
    v_add_u32 v7, {WOFF}, v7
    s_lshl_b32 s14, s13, 1
    """)
    for f in range(2):
        a(f"s_add_u32 s15, s14, {f}")
        a(f"v_xor_b32 v8, s15, v6")
        a(f"v_lshlrev_b32 v8, 6, v8")
        a(f"v_add_u32 v{BW[0]+f}, v7, v8")
        a(f"v_add_u32 v{BW[1]+f}, {2*BUF}, v{BW[0]+f}")
    for r in range(128):
        a(f"v_mov_b32 v{ACC+r}, 0")

    def reads(gs):
        st, s = divmod(gs, 4)
        buf = st % 3
        fs = gs & 1
        bs = 1 if buf == 2 else 0
        bo = 0 if buf == 2 else buf * BUF
        R = []
        for f in range(2):
            for half in range(2):
                R.append(f"ds_read_b64_tr_b16 {vr(FW[fs]+4*f+2*half,2)}, v{BW[bs]+f} offset:{bo + (16*s+4*half)*256}")
        for tb in range(4):
            R.append(f"ds_read_b128 {vr(FX[fs]+4*tb,4)}, v{BX[bs]+s} offset:{bo + tb*4096}")
        return R

    def mainloop(vtile):
        stamp(a, 2)
        a("s_barrier")
        stamp(a, 3)
        dbg_stamp(a, 0, 6, 11, 0, 190)
        for r in reads(0): a(r)
        for gs in range(40):
            st, s = divmod(gs, 4)
            fs = gs & 1
            a("s_waitcnt lgkmcnt(0)")
            if s == 3 and st < 9:
                a("s_barrier")
            R = reads(gs + 1) if gs + 1 < 40 else []
            for i in range(8):
                tb, f = i >> 1, i & 1
                acc = vr(ACC + (tb*2+f)*16, 16)
                x = vr(FX[fs]+4*tb, 4); w = vr(FW[fs]+4*f, 4)
                if vtile:
                    a(f"v_mfma_f32_32x32x16_bf16 {acc}, {x}, {w}, {acc}")
                else:
                    a(f"v_mfma_f32_32x32x16_bf16 {acc}, {w}, {x}, {acc}")
                if i < len(R): a(R[i])
        a("s_nop 15")
        dbg_stamp(a, 0, 7, 11, 0, 190)
        stamp(a, 4)

    def fin():
        if STAMP:
            a("s_waitcnt vmcnt(0)")
        stamp(a, 5); stamp_real(a, 6)
        stamp_flush(a, 0, 7, 11, 20, 0)
        if DBG: a("s_waitcnt vmcnt(0)")
        dbg_stamp(a, 0, 1, 11, 0, 2)

    a("s_cmp_ge_u32 s9, 10")
    a("s_cbranch_scc1 K1_VTILE")
    mainloop(False)
    a(f"""
    s_cmp_lt_u32 s9, 5
    s_cselect_b32 s41, 0, {SEC}
    s_cselect_b32 s42, 0, 5
    s_sub_u32 s42, s9, s42
    s_mul_i32 s43, s5, {WS_QK[1]}
    s_add_u32 s41, s41, s43
    s_add_u32 s44, s20, s41
    s_addc_u32 s45, s21, 0
    """)
    srd(a, 48, 44, 45, SEC)
    a(f"""
    s_lshl_b32 s46, s8, 3
    s_lshl_b32 s47, s12, 2
    s_add_u32 s46, s46, s47
    s_mul_i32 s46, s46, 40960
    s_lshl_b32 s47, s42, 4
    s_lshl_b32 s52, s13, 3
    s_add_u32 s47, s47, s52
    s_lshl_b32 s47, s47, 9
    s_add_u32 s46, s46, s47
    v_lshlrev_b32 v189, 4, v{LN}
    """)
    T = 128
    def qk_epi(scale):
        k = 0
        for tb in range(4):
            for f in range(2):
                acc = ACC + (tb*2+f)*16
                if scale:
                    for r in range(0, 16, 2):
                        a(f"v_pk_mul_f32 {vr(acc+r,2)}, {vr(acc+r,2)}, s[56:57]")
                for u in range(2):
                    t = T + 4*(k % 4); k += 1
                    for j in range(4):
                        a(f"v_cvt_pk_bf16_f32 v{t+j}, v{acc+8*u+2*j}, v{acc+8*u+2*j+1}")
                    a(f"s_add_u32 s53, s46, {tb*40960 + (f*4+2*u)*512}")
                    a("s_nop 0")
                    a(f"v_permlane32_swap_b32 v{t}, v{t+2}")
                    a(f"v_permlane32_swap_b32 v{t+1}, v{t+3}")
                    a(f"buffer_store_dwordx4 {vr(t,4)}, v189, s[48:51], s53 offen {STF}")
    a(f"s_mov_b32 s56, {f32bits(CQ)}")
    a(f"s_mov_b32 s57, {f32bits(CQ)}")
    a("s_cmp_lt_u32 s9, 5")
    a("s_cbranch_scc0 K1_KTILE")
    qk_epi(True)
    fin()
    a("s_endpgm")
    a("K1_KTILE:")
    qk_epi(False)
    fin()
    a("s_endpgm")
    a("K1_VTILE:")
    mainloop(True)
    a(f"""
    s_mul_i32 s43, s5, {SEC}
    s_add_u32 s43, s43, {WS_V[0]}
    s_add_u32 s44, s20, s43
    s_addc_u32 s45, s21, 0
    """)
    srd(a, 48, 44, 45, SEC)
    a(f"""
    s_lshl_b32 s46, s8, 3
    s_lshl_b32 s47, s12, 2
    s_add_u32 s46, s46, s47
    s_mul_i32 s46, s46, 1280
    s_sub_u32 s42, s9, 10
    s_lshl_b32 s42, s42, 7
    s_lshl_b32 s47, s13, 6
    s_add_u32 s42, s42, s47
    v_and_b32 v130, 31, v{LN}
    v_lshrrev_b32 v131, 5, v{LN}
    v_mul_u32_u24 v131, 320, v131
    s_mov_b32 s52, 52429
    """)
    for f in range(2):
        a(f"""
        v_add_u32 v132, s42, v130
        v_add_u32 v132, {32*f}, v132
        v_mul_lo_u32 v133, v132, s52
        v_lshrrev_b32 v133, 20, v133
        v_mul_u32_u24 v134, 20, v133
        v_sub_u32 v134, v132, v134
        v_lshlrev_b32 v134, 4, v134
        v_add_u32 v134, v134, v131
        v_mov_b32 v135, 81920
        v_mul_lo_u32 v133, v133, v135
        v_add_u32 v{189+f}, v133, v134
        """)
    T = 136
    k = 0
    for tb in range(4):
        for f in range(2):
            acc = ACC + (tb*2+f)*16
            for u in range(2):
                t = T + 4*(k % 4); k += 1
                for j in range(4):
                    a(f"v_cvt_pk_bf16_f32 v{t+j}, v{acc+8*u+2*j}, v{acc+8*u+2*j+1}")
                a(f"s_add_u32 s53, s46, {tb*1280 + u*640}")
                a(f"buffer_store_dwordx4 {vr(t,4)}, v{189+f}, s[48:51], s53 offen {STF}")
    fin()
    a("K1_END:")
    a("s_endpgm")
    return a.text(), kd(NAME, 192, 100)
```

```python
from common import *

NAME = "k2_attn_kernel"
LN = 1
Q1, Q2 = 4, 8
AK1, AK2, AV = 10, 11, 12
T0, T1, T2 = 13, 14, 15
NEGM = 16
SS = [32, 48]
P = 64
QB1, QB2 = 72, 76
O = 80
KB1 = [96, 104]
KB2 = [100, 108]
VB = [112, 120]
LDS_K2 = 65536
LDS_V = 81920
NEGINF = 0xff800000

def mf16(a, d, x, y, c):
    a(f"v_mfma_f32_32x32x16_bf16 {vr(d,16)}, {vr(x,4)}, {vr(y,4)}, {c}")
def mf8(a, d, x, y, c):
    a(f"v_mfma_f32_32x32x8_bf16 {vr(d,16)}, {vr(x,2)}, {vr(y,2)}, {c}")

def half_bcast_max(a, v, t):
    a(f"v_mov_b32 v{t}, v{v}")
    a("s_nop 1")
    a(f"v_permlane32_swap_b32 v{v}, v{t}")
    a("s_nop 1")
    a(f"v_max_f32 v{v}, v{v}, v{t}")

def out_epilogue(a, srd_o, soff_main, soff_rem):
    a(f"""
    v_mov_b32 v{T0}, v{O+8}
    v_mov_b32 v{T1}, v{O+8}
    s_nop 1
    v_permlane32_swap_b32 v{T0}, v{T1}
    s_nop 1
    v_rcp_f32 v{T1}, v{T1}
    s_nop 1
    """)
    for r in range(12):
        a(f"v_mul_f32 v{O+r}, v{O+r}, v{T1}")
    for j in range(6):
        a(f"v_cvt_pk_bf16_f32 v{P+j}, v{O+2*j}, v{O+2*j+1}")
    a(f"""
    v_lshlrev_b32 v{T0}, 4, v{LN}
    buffer_store_dwordx4 {vr(P,4)}, v{T0}, s[{srd_o}:{srd_o+3}], s{soff_main} offen {STF}
    v_mov_b32 v{T2}, 0x40000000
    v_cmp_gt_u32 vcc, 32, v{LN}
    s_nop 1
    v_cndmask_b32 v{T2}, v{T2}, v{T0}, vcc
    buffer_store_dwordx2 {vr(P+4,2)}, v{T2}, s[{srd_o}:{srd_o+3}], s{soff_rem} offen {STF}
    """)

def tile(a, t, first_bar=False, last=False):
    c, n = t & 1, (t + 1) & 1
    Sc, Sn = SS[c], SS[n]
    E = lambda i: a(f"v_exp_f32 v{Sc+i}, v{Sc+i}")
    C = lambda j: a(f"v_cvt_pk_bf16_f32 v{P+j}, v{Sc+2*j}, v{Sc+2*j+1}")
    a("s_waitcnt lgkmcnt(0)")
    mf16(a, Sn, KB1[n], Q1, vr(NEGM, 16))
    E(0); E(1)
    mf16(a, O, VB[n] + 4, P + 4, vr(O, 16))
    a("s_mov_b64 exec, s[60:61]")
    a(f"ds_read_b128 {vr(VB[n],4)}, v{AV} offset:{(t+1)*1280}")
    a(f"ds_read_b128 {vr(VB[n]+4,4)}, v{AV} offset:{(t+1)*1280+640}")
    a("s_mov_b64 exec, -1")
    E(2); E(3); C(0); E(4); C(1)
    mf8(a, Sn, KB2[n], Q2, vr(Sn, 16))
    a(f"ds_read_b128 {vr(KB1[c],4)}, v{AK1} offset:{(t+2)*1024}")
    a(f"ds_read_b64 {vr(KB2[c],2)}, v{AK2} offset:{(t+2)*256}")
    E(5); E(6); E(7); C(2); E(8); C(3); E(9); E(10)
    mf16(a, O, VB[c], P, vr(O, 16))
    E(11); C(4); E(12); E(13); E(14); E(15); C(5); C(6); C(7)

def gen():
    a = Asm()
    a(entry(NAME))
    a(f"""
    s_cmp_ge_u32 s2, 256
    s_cbranch_scc1 K2_END
    s_load_dwordx2 s[20:21], s[0:1], 64
    """)
    stamp(a, 0); stamp_real(a, 1)
    a(f"""
    s_and_b32 s3, s2, 7
    s_lshr_b32 s4, s2, 3
    s_and_b32 s5, s4, 3
    s_lshl_b32 s3, s3, 2
    s_add_u32 s5, s5, s3
    s_lshr_b32 s6, s4, 2
    v_lshrrev_b32 v2, 6, v0
    v_and_b32 v{LN}, 63, v0
    s_mul_i32 s16, s5, 81920
    v_readfirstlane_b32 s7, v2
    s_lshr_b32 s9, s5, 1
    s_and_b32 s10, s5, 1
    s_mul_i32 s11, s9, 5
    s_mul_i32 s12, s10, 3
    s_add_u32 s12, s12, s11
    s_lshl_b32 s12, s12, 9
    s_add_u32 s13, s11, 2
    s_lshl_b32 s13, s13, 9
    s_lshl_b32 s14, s10, 3
    s_add_u32 s13, s13, s14
    s_lshl_b32 s8, s6, 3
    s_add_u32 s8, s8, s7
    s_mul_i32 s15, s8, 40960
    v_lshlrev_b32 v{AK1}, 4, v{LN}
    s_cmp_ge_u32 s7, 8
    s_cbranch_scc0 K2_COMPUTE
    """)
    def mk(d, off):
        a(f"s_add_u32 s22, s20, {off}")
        a(f"s_addc_u32 s23, s21, 0")
        srd(a, d, 22, 23, SEC)
    a(f"""
    s_sub_u32 s7, s7, 8
    v_lshrrev_b32 v2, 1, v{LN}
    v_lshlrev_b32 v2, 4, v2
    v_and_b32 v3, 1, v{LN}
    v_lshlrev_b32 v3, 2, v3
    v_add_u32 v2, v2, v3
    s_mul_i32 s65, s7, {2*40960}
    s_add_u32 s66, s65, s13
    s_add_u32 s65, s65, s12
    s_lshl_b32 s67, s7, 11
    s_lshl_b32 s69, s7, 9
    s_lshl_b32 s70, s7, 10
    s_add_u32 s68, s70, s16
    s_and_b32 s71, s7, 1
    s_lshl_b32 s71, s71, 10
    s_add_u32 s72, s71, s16
    s_waitcnt lgkmcnt(0)
    """)
    mk(28, WS_QK[0] + SEC); mk(32, WS_V[0])
    def grp(g):
        for i in range(2):
            a(f"s_add_u32 m0, s67, {g*8192 + i*1024}")
            a(f"s_add_u32 s62, s65, {(g*8+i)*40960}")
            a(f"buffer_load_dwordx4 v{AK1}, s[28:31], s62 offen lds")
            a(f"s_add_u32 m0, s69, {LDS_K2 + g*2048 + i*256}")
            a(f"s_add_u32 s62, s66, {(g*8+i)*40960}")
            a(f"buffer_load_dword v2, s[28:31], s62 offen lds")
        for i in range(2):
            a(f"s_add_u32 m0, s70, {LDS_V + g*10240 + i*4096}")
            a(f"s_add_u32 s62, s68, {g*10240 + i*4096}")
            a(f"buffer_load_dwordx4 v{AK1}, s[32:35], s62 offen lds")
        a(f"s_add_u32 m0, s71, {LDS_V + g*10240 + 8192}")
        a(f"s_add_u32 s62, s72, {g*10240 + 8192}")
        a(f"buffer_load_dwordx4 v{AK1}, s[32:35], s62 offen lds")
    grp(0); grp(1)
    a("s_waitcnt vmcnt(7)")
    a("s_barrier")
    for g in range(2, 8): grp(g)
    a("s_waitcnt vmcnt(35)")
    a("s_barrier")
    a("s_waitcnt vmcnt(0)")
    a("s_barrier")
    a(f"""
    s_lshl_b32 s40, s2, 2
    s_add_u32 s40, s40, s7
    s_load_dwordx2 s[44:45], s[0:1], 16
    s_load_dwordx2 s[46:47], s[0:1], 40
    s_add_u32 s22, s20, {WS_WP}
    s_addc_u32 s23, s21, 0
    """)
    srd(a, 36, 22, 23, 1600 * 1024)
    a(f"""
    v_lshrrev_b32 v4, 4, v{LN}
    v_and_b32 v5, 15, v{LN}
    s_waitcnt lgkmcnt(0)
    K2_WPLOOP:
    s_mul_i32 s41, s40, 5243
    s_lshr_b32 s41, s41, 19
    s_mul_i32 s42, s41, 100
    s_sub_u32 s42, s40, s42
    s_mul_i32 s43, s42, 205
    s_lshr_b32 s43, s43, 10
    s_mul_i32 s48, s43, 5
    s_sub_u32 s48, s42, s48
    s_cmp_ge_u32 s41, 8
    s_cselect_b32 s52, s46, s44
    s_cselect_b32 s53, s47, s45
    s_and_b32 s41, s41, 7
    s_mul_i32 s41, s41, 160
    s_lshl_b32 s48, s48, 5
    s_add_u32 s41, s41, s48
    s_lshl_b32 s43, s43, 2
    """)
    srd(a, 56, 52, 53, WOB)
    a(f"""
    v_add_u32 v6, s43, v4
    v_mul_u32_u24 v7, 205, v6
    v_lshrrev_b32 v7, 10, v7
    v_mul_u32_u24 v8, 5, v7
    v_sub_u32 v8, v6, v8
    v_mul_u32_u24 v7, 40, v7
    v_lshrrev_b32 v9, 1, v8
    v_mul_u32_u24 v9, 20, v9
    v_and_b32 v11, 1, v8
    v_lshl_add_u32 v9, v11, 2, v9
    v_cmp_eq_u32 vcc, 4, v8
    v_mov_b32 v11, 8
    v_cndmask_b32 v9, v9, 16, vcc
    v_cndmask_b32 v11, v11, 20, vcc
    v_add_u32 v7, v7, v9
    v_add_u32 v11, v7, v11
    v_mul_u32_u24 v7, 1280, v7
    v_mul_u32_u24 v11, 1280, v11
    v_lshl_add_u32 v7, v5, 1, v7
    v_lshl_add_u32 v11, v5, 1, v11
    """)
    for e in range(8):
        a(f"buffer_load_ushort v{16+e}, v{7 if e < 4 else 11}, s[56:59], s41 offen offset:{(e&3)*1280}")
    a("s_lshl_b32 s48, s40, 10")
    a("s_waitcnt vmcnt(0)")
    for j in range(4):
        a(f"v_lshl_or_b32 v{24+j}, v{17+2*j}, 16, v{16+2*j}")
    a(f"""
    buffer_store_dwordx4 v[24:27], v{AK1}, s[36:39], s48 offen
    s_add_u32 s40, s40, 1024
    s_cmp_lt_u32 s40, 1600
    s_cbranch_scc1 K2_WPLOOP
    """)
    a("s_endpgm")
    a("K2_COMPUTE:")
    dbg_stamp(a, 1, 2, 7, 7, 126)
    a(f"""
    v_and_b32 v2, 31, v{LN}
    v_lshrrev_b32 v3, 5, v{LN}
    v_lshlrev_b32 v{T0}, 4, v2
    v_mov_b32 v{T1}, 0x40000000
    v_cmp_gt_u32 vcc, 32, v{LN}
    s_add_u32 s62, s15, s12
    s_add_u32 s63, s15, s13
    v_cndmask_b32 v{T1}, v{T1}, v{T0}, vcc
    s_waitcnt lgkmcnt(0)
    """)
    mk(24, WS_QK[0])
    a(f"""
    buffer_load_dwordx4 {vr(Q1,4)}, v{AK1}, s[24:27], s62 offen
    buffer_load_dwordx2 {vr(Q2,2)}, v{T1}, s[24:27], s63 offen
    v_cmp_gt_u32 s[60:61], 20, v2
    v_cmp_eq_u32 vcc, 20, v2
    v_mov_b32 v{T2}, 0x3f803f80
    v_lshlrev_b32 v{AK2}, 3, v2
    v_cndmask_b32 v{T2}, 0, v{T2}, vcc
    v_add_u32 v{AK2}, {LDS_K2}, v{AK2}
    """)
    for r in range(16):
        a(f"v_mov_b32 v{VB[0]+r}, v{T2}")
    mk(36, WS_O[0])
    a(f"""
    s_lshl_b32 s56, s10, 1
    s_add_u32 s56, s56, s11
    s_lshl_b32 s56, s56, 9
    s_add_u32 s57, s11, 4
    s_lshl_b32 s57, s57, 9
    s_add_u32 s57, s57, s14
    s_add_u32 s70, s56, s15
    s_add_u32 s71, s57, s15
    s_mov_b32 s72, 5
    s_mov_b32 s73, 0
    """)
    if PRIO:
        a("s_setprio 1\ns_cmp_lt_u32 s7, 4\ns_cbranch_scc0 K2_NOPRIO\ns_setprio 2\nK2_NOPRIO:")
    a("s_waitcnt vmcnt(0)")
    stamp(a, 2)
    a("s_barrier")
    stamp(a, 3)
    a(f"""
    ds_read_b128 {vr(KB1[0],4)}, v{AK1}
    ds_read_b64 {vr(KB2[0],2)}, v{AK2}
    s_waitcnt lgkmcnt(0)
    """)
    mf16(a, SS[0], KB1[0], Q1, "0")
    mf8(a, SS[0], KB2[0], Q2, vr(SS[0], 16))
    a("s_nop 15")
    a(f"v_max3_f32 v{T0}, v{SS[0]}, v{SS[0]+1}, v{SS[0]+2}")
    for i in range(3, 15, 2):
        a(f"v_max3_f32 v{T0}, v{T0}, v{SS[0]+i}, v{SS[0]+i+1}")
    a(f"v_max_f32 v{T0}, v{T0}, v{SS[0]+15}")
    half_bcast_max(a, T0, T1)
    a("K2_RESTART:")
    for r in range(16):
        a(f"v_sub_f32 v{NEGM+r}, 0, v{T0}")
    for r in range(16):
        a(f"v_mov_b32 v{O+r}, 0")
    for r in range(4):
        a(f"v_mov_b32 v{P+4+r}, 0")
    a(f"""
    v_lshlrev_b32 v{AK1}, 4, v{LN}
    v_and_b32 v2, 31, v{LN}
    v_lshlrev_b32 v{AK2}, 3, v2
    v_add_u32 v{AK2}, {LDS_K2}, v{AK2}
    v_lshrrev_b32 v3, 5, v{LN}
    v_mul_u32_u24 v{AV}, 320, v3
    v_lshlrev_b32 v2, 4, v2
    v_add_u32 v{AV}, v{AV}, v2
    v_add_u32 v{AV}, {LDS_V}, v{AV}
    ds_read_b128 {vr(KB1[0],4)}, v{AK1}
    ds_read_b64 {vr(KB2[0],2)}, v{AK2}
    ds_read_b128 {vr(KB1[1],4)}, v{AK1} offset:1024
    ds_read_b64 {vr(KB2[1],2)}, v{AK2} offset:256
    s_mov_b64 exec, s[60:61]
    ds_read_b128 {vr(VB[0],4)}, v{AV}
    ds_read_b128 {vr(VB[0]+4,4)}, v{AV} offset:640
    ds_read_b128 {vr(VB[1]+4,4)}, v{AV} offset:640
    s_mov_b64 exec, -1
    s_waitcnt lgkmcnt(0)
    """)
    mf16(a, SS[0], KB1[0], Q1, vr(NEGM, 16))
    mf8(a, SS[0], KB2[0], Q2, vr(SS[0], 16))
    a("s_nop 15")
    a("s_mov_b32 s74, 0")
    dbg_stamp(a, 1, 8, 7, 7, 2)
    stamp(a, 4)
    a("K2_LOOP:")
    for t in range(8):
        if t == 6:
            a("""
            s_bitcmp1_b32 s72, 0
            s_cbranch_scc0 K2_NOBAR
            s_barrier
            K2_NOBAR:
            s_lshr_b32 s72, s72, 1
            """)
        tile(a, t)
    a(f"""
    v_add_u32 v{AK1}, 8192, v{AK1}
    v_add_u32 v{AK2}, 2048, v{AK2}
    v_add_u32 v{AV}, 10240, v{AV}
    s_add_u32 s74, s74, 1
    """)
    if 0 < PRIO < 8:
        a(f"""
        s_cmp_eq_u32 s74, {PRIO}
        s_cselect_b32 s62, s7, 4
        s_cmp_lt_u32 s62, 4
        s_cbranch_scc0 K2_KEEPPRIO
        s_setprio 0
        K2_KEEPPRIO:
        """)
    a(f"""
    s_cmp_lt_u32 s74, 8
    s_cbranch_scc1 K2_LOOP
    s_nop 1
    """)
    mf16(a, O, VB[1] + 4, P + 4, vr(O, 16))
    a("s_waitcnt lgkmcnt(0)")
    a("s_nop 15")
    a(f"v_mov_b32 v{T1}, 0")
    for r in range(12):
        a(f"v_fma_f32 v{T1}, v{O+r}, 0, v{T1}")
    a(f"""
    v_mov_b32 v{T2}, 0x5f800000
    v_cmp_gt_u32 vcc, 32, v{LN}
    s_nop 1
    v_cndmask_b32 v{T0}, v{O+8}, 0, vcc
    v_add_f32 v{T0}, v{T0}, v{T1}
    v_cmp_nle_f32 vcc, v{T0}, v{T2}
    s_nop 4
    s_cbranch_vccz K2_FIN
    s_cmp_eq_u32 s73, 0
    s_cbranch_scc0 K2_FIN
    s_mov_b32 s73, 1
    """)
    a(f"""
    v_lshlrev_b32 v{AK1}, 4, v{LN}
    v_and_b32 v2, 31, v{LN}
    v_lshlrev_b32 v{AK2}, 3, v2
    v_add_u32 v{AK2}, {LDS_K2}, v{AK2}
    v_mov_b32 v{T0}, 0x{NEGINF:x}
    s_mov_b32 s74, 0
    K2_MAXLOOP:
    ds_read_b128 {vr(KB1[0],4)}, v{AK1}
    ds_read_b64 {vr(KB2[0],2)}, v{AK2}
    s_waitcnt lgkmcnt(0)
    """)
    mf16(a, SS[0], KB1[0], Q1, "0")
    mf8(a, SS[0], KB2[0], Q2, vr(SS[0], 16))
    a("s_nop 15")
    for i in range(0, 16, 2):
        a(f"v_max3_f32 v{T0}, v{T0}, v{SS[0]+i}, v{SS[0]+i+1}")
    a(f"""
    v_add_u32 v{AK1}, 1024, v{AK1}
    v_add_u32 v{AK2}, 256, v{AK2}
    s_add_u32 s74, s74, 1
    s_cmp_lt_u32 s74, 64
    s_cbranch_scc1 K2_MAXLOOP
    """)
    half_bcast_max(a, T0, T1)
    a("s_branch K2_RESTART")
    a("K2_FIN:")
    stamp(a, 5)
    out_epilogue(a, 36, 70, 71)
    stamp(a, 6)
    if not BSPLIT:
        a("s_cmp_lt_u32 s7, 4")
        a("s_cbranch_scc0 K2_DONE")
    mk(40, WS_QK[1]); mk(44, WS_QK[1] + SEC); mk(48, WS_V[1]); mk(52, WS_O[1])
    a("s_mov_b32 s74, 0")
    a("K2_BLOOP:")
    a(f"""
    v_and_b32 v2, 31, v{LN}
    v_lshrrev_b32 v3, 5, v{LN}
    v_lshlrev_b32 v{AK1}, 4, v{LN}
    v_lshlrev_b32 v{T0}, 4, v2
    v_mov_b32 v{T1}, 0x40000000
    v_cmp_gt_u32 vcc, 32, v{LN}
    v_mul_u32_u24 v{AV}, 320, v3
    v_add_u32 v{AV}, v{AV}, v{T0}
    v_cndmask_b32 v{T1}, v{T1}, v{T0}, vcc
    s_cmp_eq_u32 s8, 0
    s_cselect_b32 s17, 0, 1
    s_sub_u32 s18, s8, s17
    s_mul_i32 s19, s18, 40960
    s_add_u32 s62, s15, s12
    buffer_load_dwordx4 {vr(QB1,4)}, v{AK1}, s[40:43], s62 offen
    buffer_load_dwordx4 {vr(KB1[0],4)}, v{AK1}, s[44:47], s62 offen
    s_add_u32 s62, s15, s13
    buffer_load_dwordx2 {vr(QB2,2)}, v{T1}, s[40:43], s62 offen
    buffer_load_dwordx2 {vr(KB2[0],2)}, v{T0}, s[44:47], s62 offen
    s_add_u32 s62, s19, s12
    buffer_load_dwordx4 {vr(KB1[1],4)}, v{AK1}, s[44:47], s62 offen
    s_add_u32 s62, s19, s13
    buffer_load_dwordx2 {vr(KB2[1],2)}, v{T0}, s[44:47], s62 offen
    s_mul_i32 s63, s8, 1280
    s_add_u32 s63, s63, s16
    s_mul_i32 s64, s18, 1280
    s_add_u32 s64, s64, s16
    s_mov_b64 exec, s[60:61]
    buffer_load_dwordx4 {vr(VB[0],4)}, v{AV}, s[48:51], s63 offen
    buffer_load_dwordx4 {vr(VB[0]+4,4)}, v{AV}, s[48:51], s63 offen offset:640
    buffer_load_dwordx4 {vr(VB[1],4)}, v{AV}, s[48:51], s64 offen offset:640
    s_mov_b64 exec, -1
    """)
    a(f"""
    v_add_u32 v3, 18, v2
    v_mov_b32 v16, 0x5555
    v_mov_b32 v17, 0
    v_lshlrev_b64 v[16:17], v3, v[16:17]
    v_lshrrev_b32 v3, 5, v{LN}
    v_lshlrev_b32 v3, 2, v3
    v_lshrrev_b64 v[16:17], v3, v[16:17]
    s_sub_u32 s62, 0, s17
    v_and_b32 v16, s62, v16
    v_not_b32 v16, v16
    v_not_b32 v17, v17
    """)
    for g in range(4):
        for r in range(4):
            a(f"v_bfe_i32 v{SS[0]+4*g+r}, v17, {8*g+r}, 1")
            a(f"v_lshlrev_b32 v{SS[0]+4*g+r}, 23, v{SS[0]+4*g+r}")
    for g in range(4):
        for r in range(4):
            if g < 2:
                a(f"v_mov_b32 v{SS[1]+4*g+r}, 0x{NEGINF:x}")
            else:
                a(f"v_bfe_i32 v{SS[1]+4*g+r}, v16, {8*g+r}, 1")
                a(f"v_lshlrev_b32 v{SS[1]+4*g+r}, 23, v{SS[1]+4*g+r}")
    a("s_waitcnt vmcnt(0)")
    mf16(a, SS[0], KB1[0], QB1, vr(SS[0], 16))
    mf16(a, SS[1], KB1[1], QB1, vr(SS[1], 16))
    mf8(a, SS[0], KB2[0], QB2, vr(SS[0], 16))
    mf8(a, SS[1], KB2[1], QB2, vr(SS[1], 16))
    a("s_nop 15")
    regs = [SS[0] + i for i in range(16)] + [SS[1] + 8 + i for i in range(8)]
    a(f"v_max3_f32 v{T0}, v{regs[0]}, v{regs[1]}, v{regs[2]}")
    for i in range(3, 23, 2):
        a(f"v_max3_f32 v{T0}, v{T0}, v{regs[i]}, v{regs[i+1]}")
    a(f"v_max_f32 v{T0}, v{T0}, v{regs[23]}")
    half_bcast_max(a, T0, T1)
    for r in regs:
        a(f"v_sub_f32 v{r}, v{r}, v{T0}")
    for r in regs:
        a(f"v_exp_f32 v{r}, v{r}")
    a("s_nop 0")
    for j in range(8):
        a(f"v_cvt_pk_bf16_f32 v{P+j}, v{SS[0]+2*j}, v{SS[0]+2*j+1}")
    for j in range(4):
        a(f"v_cvt_pk_bf16_f32 v{QB1+j}, v{SS[1]+8+2*j}, v{SS[1]+8+2*j+1}")
    a("s_nop 1")
    mf16(a, O, VB[0], P, "0")
    mf16(a, O, VB[0] + 4, P + 4, vr(O, 16))
    mf16(a, O, VB[1], QB1, vr(O, 16))
    a(f"""
    s_add_u32 s70, s56, s15
    s_add_u32 s71, s57, s15
    s_nop 15
    """)
    out_epilogue(a, 52, 70, 71)
    a(f"""
    s_add_u32 s8, s8, 4
    s_add_u32 s15, s15, {4*40960}
    s_add_u32 s74, s74, 1
    s_cmp_lt_u32 s74, {1 if BSPLIT else 2}
    s_cbranch_scc1 K2_BLOOP
    """)
    a("K2_DONE:")
    if STAMP:
        a("s_waitcnt vmcnt(0)")
    if DBG: a("s_waitcnt vmcnt(0)")
    dbg_stamp(a, 1, 3, 7, 7, 2)
    stamp(a, 7); stamp_real(a, 8)
    stamp_flush(a, 1, 9, 7, 20, 0)
    stamp_flush(a, 1, 9, 7, 20, 7, slot=1)
    a("K2_END:")
    a("s_endpgm")
    return a.text(), kd(NAME, 128, 100)
```
